```python
import torch

def _softmax(x, axis=-1):
    return torch.softmax(x, dim=axis)

def _gelu(x):
    return torch.nn.functional.gelu(x, approximate='tanh')

def _silu(x):
    return torch.nn.functional.silu(x)

def _sigmoid(x):
    return torch.sigmoid(x)

def _layernorm(x, axis=-1, eps=1e-05):
    m = x.mean(dim=axis, keepdim=True)
    v = x.var(dim=axis, keepdim=True, unbiased=False)
    return (x - m) / torch.sqrt(v + eps)

def _scatter_add(tgt, idx, src, axis=0):
    return tgt.clone().index_add_(axis, idx, src)

def _segment_sum(src, seg, n):
    out = torch.zeros((n,) + src.shape[1:], dtype=src.dtype)
    return out.index_add_(0, seg, src)

def _pad(x, pw):
    flat = tuple((v for pair in reversed(pw) for v in pair))
    return torch.nn.functional.pad(x, flat)
kernel_name = 'adaLN_cond__sliding_block__moe_arch_mod__prompt'

def setup_inputs():

    _w = lambda a: (lambda t: t.to(torch.bfloat16) if t.is_floating_point() else t)(torch.as_tensor(a))

    def _A_setup():
        B, S, D = (1, 2048, 512)
        return {'x': _w((lambda *s: torch.randn(*s, dtype=torch.bfloat16) * 0.05)(B, S, D)), 'wqkv': _w((lambda *s: torch.randn(*s, dtype=torch.bfloat16) * 0.05)(D, 3 * D)), 'wo': _w((lambda *s: torch.randn(*s, dtype=torch.bfloat16) * 0.05)(D, D))}
    _A_in = _A_setup()

    def _B_setup():
        B, S, D, F, C = (1, 2048, 512, 1792, 2)
        return {'x': _w((lambda *s: torch.randn(*s, dtype=torch.bfloat16) * 0.05)(B, S, D)), 'w_r': _w((lambda *s: torch.randn(*s, dtype=torch.bfloat16) * 0.05)(D)), 'w_gate': _w((lambda *s: torch.randn(*s, dtype=torch.bfloat16) * 0.05)(D, F)), 'w_up': _w((lambda *s: torch.randn(*s, dtype=torch.bfloat16) * 0.05)(D, F)), 'w_down': _w((lambda *s: torch.randn(*s, dtype=torch.bfloat16) * 0.05)(F, D))}
    _B_in = _B_setup()
    return {'A_x': _A_in['x'], 'A_wqkv': _A_in['wqkv'], 'A_wo': _A_in['wo'], 'B_x': _B_in['x'], 'B_w_r': _B_in['w_r'], 'B_w_gate': _B_in['w_gate'], 'B_w_up': _B_in['w_up'], 'B_w_down': _B_in['w_down'], 'c': _w((lambda *s: torch.randn(*s, dtype=torch.bfloat16) * 0.1)(1, 512) * 8.0), 'w_mod': _w((lambda *s: torch.randn(*s, dtype=torch.bfloat16) * 0.1)(512, 6 * 512) * 512 ** (-0.5) * 8.0)}

def reference(A_x, A_wqkv, A_wo, B_x, B_w_r, B_w_gate, B_w_up, B_w_down, c, w_mod):

    def _A_ref(x, wqkv, wo):
        B, S, D = x.shape
        H = 32
        Dh = D // H
        W = 256
        qkv = (lambda x, *d: x.permute(*d))((x @ wqkv).reshape(B, S, 3, H, Dh), 2, 0, 3, 1, 4)
        q, k, v = (qkv[0], qkv[1], qkv[2])
        scores = torch.einsum('bhqd,bhkd->bhqk', q, k) * Dh ** (-0.5)
        idx = torch.arange(S)
        mask = (idx[:, None] - idx[None, :] >= 0) & (idx[:, None] - idx[None, :] < W)
        scores = torch.where(mask[None, None], scores, -1000000000.0)
        p = _softmax(scores, axis=-1)
        o = torch.einsum('bhqk,bhkd->bhqd', p, v)
        return (lambda x, *d: x.permute(*d))(o, 0, 2, 1, 3).reshape(B, S, D) @ wo

    def _B_ref(x, w_r, w_gate, w_up, w_down):
        B, S, D = x.shape
        C = 2
        r = x @ w_r
        idx = torch.argsort(-r, axis=-1)[:, :C]
        idx_e = (lambda x, n, axis: torch.repeat_interleave(x, n, dim=axis))(idx.reshape(B, C, 1), D, axis=2)
        x_sel = (lambda x, i, axis: torch.take_along_dim(x, i, dim=axis))(x, idx_e, axis=1)
        g = _silu(x_sel @ w_gate)
        u = x_sel @ w_up
        y = g * u @ w_down
        r_sel = _sigmoid((lambda x, i, axis: torch.take_along_dim(x, i, dim=axis))(r, idx, axis=1))
        y = y * r_sel.reshape(B, C, 1)
        b_off = (torch.arange(B) * S).reshape(B, 1)
        flat_idx = (idx + b_off).reshape(B * C)
        zero = (x * 0.0).reshape(B * S, D)
        upd = _scatter_add(zero, flat_idx, y.reshape(B * C, D), axis=0)
        return x + upd.reshape(B, S, D)
    x = A_x
    mod = (_silu(c) @ w_mod).reshape(c.shape[0], 6, 1, -1)
    sa, ca, ga, sb, cb, gb = (mod[:, 0].clone(), mod[:, 1].clone(), mod[:, 2].clone(), mod[:, 3].clone(), mod[:, 4].clone(), mod[:, 5].clone())
    h = _layernorm(x, axis=-1) * (1 + ca) + sa
    x = x + ga * _A_ref(h, A_wqkv, A_wo)
    h = _layernorm(x, axis=-1) * (1 + cb) + sb
    x = x + gb * _B_ref(h, B_w_r, B_w_gate, B_w_up, B_w_down)
    return x
```

```python
import re

REG = re.compile(r"^(-?\|?)?([vas])(?:(\d+)|\[(\d+):(\d+)\])\|?$")
TRANS = ("v_exp_f32", "v_log_f32", "v_rcp_f32", "v_rsq_f32", "v_sqrt_f32", "v_sin_f32", "v_cos_f32")


def regs_of(tok):
    tok = tok.strip()
    if tok.startswith("abs(") or tok.startswith("neg("):
        tok = tok[4:-1]
    if tok == "vcc":
        return {("s", 106), ("s", 107)}
    if tok == "vcc_lo":
        return {("s", 106)}
    if tok == "vcc_hi":
        return {("s", 107)}
    if tok == "exec":
        return {("s", 126), ("s", 127)}
    if tok == "exec_lo":
        return {("s", 126)}
    if tok == "exec_hi":
        return {("s", 127)}
    if tok == "m0":
        return {("s", 124)}
    m = REG.match(tok)
    if not m:
        return set()
    f = m.group(2)
    if m.group(3) is not None:
        return {(f, int(m.group(3)))}
    return {(f, i) for i in range(int(m.group(4)), int(m.group(5)) + 1)}


class Ins:
    __slots__ = ("text", "op", "cls", "rd", "wr", "srcA", "srcB", "srcC", "passes", "dpp", "ws", "wide_store", "lds_dma", "lanesel")

    def __init__(self, text):
        self.text = text
        t = text.split(";")[0].strip()
        parts = t.split(None, 1)
        op = parts[0]
        self.op = op
        rest = parts[1] if len(parts) > 1 else ""
        ops, depth, cur = [], 0, ""
        for ch in rest:
            if ch in "[(":
                depth += 1
            if ch in "])":
                depth -= 1
            if ch == "," and depth == 0:
                ops.append(cur.strip())
                cur = ""
            else:
                cur += ch
        mods = ""
        if cur.strip():
            sp = cur.strip().split(None, 1)
            ops.append(sp[0])
            mods = sp[1] if len(sp) > 1 else ""
        R = [regs_of(o) for o in ops]
        U = lambda l: set().union(*l) if l else set()
        self.rd, self.wr = set(), set()
        self.srcA = self.srcB = self.srcC = set()
        self.passes = 0
        self.dpp = False
        self.ws = 1
        self.wide_store = set()
        self.lds_dma = False
        self.lanesel = set()
        if op.startswith("v_mfma"):
            self.cls = "mfma"
            self.wr = R[0]
            self.srcA, self.srcB, self.srcC = R[1], R[2], R[3]
            self.rd = U(R[1:])
            self.passes = 8 if "32x32" in op else 4
        elif op.startswith("v_"):
            self.cls = "valu"
            self.dpp = ("_dpp" in op) or any(k in mods for k in ("row_", "quad_perm", "wave_"))
            if op.startswith("v_cmp"):
                self.wr = R[0]
                self.rd = U(R[1:])
            elif op.startswith("v_permlane") or op.startswith("v_swap"):
                self.wr = R[0] | R[1]
                self.rd = R[0] | R[1]
            elif op.startswith(("v_add_co", "v_sub_co", "v_addc_co", "v_subb_co", "v_div_scale", "v_mad_u64")):
                self.wr = R[0] | R[1]
                self.rd = U(R[2:])
            elif op == "v_nop":
                pass
            else:
                self.wr = R[0]
                self.rd = U(R[1:])
                if op.startswith(("v_fmac", "v_dot2c", "v_writelane", "v_pk_fmac")) or self.dpp:
                    self.rd |= R[0]
                if op.startswith(("v_readlane", "v_writelane")):
                    self.lanesel = R[2]
        elif op.startswith("ds_"):
            self.cls = "lds"
            if op.startswith(("ds_read", "ds_bpermute", "ds_permute", "ds_swizzle")) or "_rtn" in op:
                self.wr = R[0]
                self.rd = U(R[1:])
            else:
                self.rd = U(R)
        elif op.startswith(("buffer_", "global_")):
            self.cls = "vmem"
            allm = " " + mods + " "
            if op.startswith(("buffer_wbl2", "buffer_inv")):
                pass
            elif " lds " in allm or "load_lds" in op:
                self.lds_dma = True
                self.rd = U(R) | {("s", 124)}
            elif "_load_" in op:
                self.wr = R[0]
                self.rd = U(R[1:])
            else:
                self.rd = U(R)
                if op.endswith(("x3", "x4")):
                    self.wide_store = R[0] if op.startswith("buffer_") else R[1]
        elif op.startswith(("s_load", "s_buffer_load", "s_memtime", "s_memrealtime")):
            self.cls = "smem"
            self.wr = R[0]
            self.rd = U(R[1:])
        elif op == "s_nop":
            self.cls = "nop"
            self.ws = int(ops[0], 0) + 1
        elif op in ("s_waitcnt", "s_barrier", "s_endpgm", "s_sleep", "s_setprio") or op.startswith(("s_branch", "s_cbranch")):
            self.cls = "ctl"
        elif op.startswith("s_"):
            self.cls = "salu"
            if op.startswith(("s_cmp", "s_bitcmp")):
                self.rd = U(R)
            elif op.startswith("s_setpc"):
                self.rd = U(R)
            else:
                self.wr = R[0]
                self.rd = U(R[1:])
                if "saveexec" in op:
                    self.wr |= {("s", 126), ("s", 127)}
                if op.startswith(("s_addk", "s_mulk")):
                    self.rd |= R[0]
        else:
            raise ValueError("unknown instruction: " + text)


def V(r):
    return {x for x in r if x[0] in "va"}


def S(r):
    return {x for x in r if x[0] == "s"}


class KB:
    def __init__(self):
        self.out = []
        self.hist = []
        self.pos = 0
        self.vm = []
        self.lg = []
        self.nid = 0
        self.nlab = 0
        self.nops = 0

    def raw(self, s):
        self.out.append(s)

    def comment(self, s):
        self.out.append("    ; " + s)

    def newlabel(self, base="L"):
        self.nlab += 1
        return f"{base}_{self.nlab}"

    def label(self, name, pad=True):
        self.out.append(name + ":")

    def _emit(self, ins):
        self.out.append("    " + ins.text)
        self.hist.append((ins, self.pos))
        self.pos += ins.ws
        if len(self.hist) > 40:
            self.hist.pop(0)

    def _wait(self, vm=None, lg=None):
        t = "s_waitcnt"
        if vm is not None:
            assert vm <= 63
            t += f" vmcnt({vm})"
            self.vm = self.vm[len(self.vm) - vm:] if vm else []
        if lg is not None:
            lg = min(lg, 15)
            t += f" lgkmcnt({lg})"
            self.lg = self.lg[len(self.lg) - lg:] if lg else []
        self._emit(Ins(t))

    def wait_vm(self, tok=None):
        if tok is None:
            if self.vm:
                self._wait(vm=0)
            return
        for i, e in enumerate(self.vm):
            if e["id"] == tok:
                self._wait(vm=len(self.vm) - 1 - i)
                return

    def wait_lg(self, tok=None):
        if tok is None:
            if self.lg:
                self._wait(lg=0)
            return
        for i, e in enumerate(self.lg):
            if e["id"] == tok:
                n = len(self.lg) - 1 - i
                if any(x["smem"] for x in self.lg):
                    n = 0
                self._wait(lg=n)
                return

    def force_wait(self, vm=None, lg=None):
        self._wait(vm=vm, lg=lg)

    def barrier(self):
        self.wait_lg()
        self("s_barrier")

    def _need(self, ins):
        need = 0
        rdv, wrv = V(ins.rd), V(ins.wr)
        rds = S(ins.rd)
        for p, ppos in self.hist:
            dist = self.pos - ppos - p.ws
            req = 0
            pw = p.wr
            if p.cls == "valu":
                pwv, pws = V(pw), S(pw)
                if ins.cls == "mfma" and pwv & rdv:
                    req = max(req, 2)
                if ins.cls == "valu":
                    if pws & rds:
                        req = max(req, 2)
                    if pws & ins.lanesel:
                        req = max(req, 4)
                    if ins.dpp and pwv & rdv:
                        req = max(req, 2)
                    if ins.op.startswith(("v_readlane", "v_readfirstlane")) and pwv & rdv:
                        req = max(req, 1)
                    if ins.op.startswith("v_permlane") and pwv & rdv:
                        req = max(req, 2)
                    if p.op.startswith(TRANS) and pwv & rdv:
                        req = max(req, 1)
                if ins.cls == "vmem" and pws & rds:
                    req = max(req, 5)
                if ins.cls in ("salu", "smem") and pws & rds:
                    req = max(req, 1)
                if p.op.startswith("v_dot"):
                    if pwv & (rdv | wrv):
                        same = ins.op == p.op
                        if not (same and ins.wr == p.wr):
                            req = max(req, 3)
                if p.op.startswith(TRANS) and ins.cls in ("vmem", "lds", "mfma") and pwv & rdv:
                    req = max(req, 2 if ins.cls == "mfma" else 1)
            elif p.cls == "mfma":
                big = p.passes == 8
                if ins.cls == "mfma":
                    if pw & (ins.srcA | ins.srcB):
                        req = max(req, 12 if big else 8)
                    if pw & ins.srcC:
                        if not (pw == ins.srcC and p.passes == ins.passes):
                            req = max(req, 10 if big else 6)
                    elif pw & ins.wr:
                        if p.passes != ins.passes:
                            req = max(req, 10 if big else 6)
                elif ins.cls in ("valu", "vmem", "lds"):
                    if pw & (rdv | wrv):
                        req = max(req, 12 if big else 8)
                    if p.srcC & wrv:
                        req = max(req, 7 if big else 3)
            elif p.cls == "salu":
                if ("s", 124) in pw and ins.lds_dma:
                    req = max(req, 1)
            elif p.cls == "vmem":
                if p.wide_store & wrv:
                    req = max(req, 2)
            if req > dist:
                need = max(need, req - dist)
        return need

    def __call__(self, s):
        tok = None
        for line in s.strip("\n").split("\n"):
            line = line.strip()
            if not line:
                continue
            if line.startswith(";"):
                self.out.append("    " + line)
                continue
            if line.endswith(":") or line.startswith("."):
                self.out.append(line)
                continue
            tok = self.ins(line)
        return tok

    def ins(self, line):
        ins = Ins(line)
        if ins.op == "s_waitcnt":
            m = re.search(r"vmcnt\((\d+)\)", line)
            n = re.search(r"lgkmcnt\((\d+)\)", line)
            self._wait(vm=int(m.group(1)) if m else None, lg=int(n.group(1)) if n else None)
            return None
        touch = ins.rd | ins.wr
        vm = lg = None
        for i, e in enumerate(self.vm):
            if e["wr"] & touch:
                vm = len(self.vm) - 1 - i
        for i, e in enumerate(self.lg):
            if e["wr"] & touch:
                lg = len(self.lg) - 1 - i
        if lg is not None and any(x["smem"] for x in self.lg):
            lg = 0
        if vm is not None or lg is not None:
            self._wait(vm=vm, lg=lg)
        n = self._need(ins)
        while n > 0:
            k = min(n, 16)
            self._emit(Ins(f"s_nop {k-1}"))
            self.nops += k
            n -= k
        self._emit(ins)
        if ins.cls == "vmem":
            self.nid += 1
            self.vm.append({"id": self.nid, "wr": ins.wr})
            assert len(self.vm) <= 63, "vmcnt overflow"
            return self.nid
        if ins.cls in ("lds", "smem"):
            self.nid += 1
            self.lg.append({"id": self.nid, "wr": ins.wr, "smem": ins.cls == "smem"})
            return self.nid
        return None

    def settle(self):
        last = 0
        for p, ppos in self.hist:
            dist = self.pos - ppos - p.ws
            req = {"mfma": 12, "valu": 5, "salu": 1, "vmem": 2}.get(p.cls, 0)
            last = max(last, req - dist)
        while last > 0:
            k = min(last, 16)
            self._emit(Ins(f"s_nop {k-1}"))
            last -= k

    def text(self):
        return "\n".join(self.out) + "\n"


def interleave(main, fill, per=2, start=0):
    out, j = [], 0
    for i, m in enumerate(main):
        out.append(m)
        if i >= start:
            for _ in range(per):
                if j < len(fill):
                    out.append(fill[j])
                    j += 1
    out += fill[j:]
    return out
```

```python
import sys
from kb import KB, interleave

NAME = "adaLN_cond__sliding_block__moe_arch_mod__prompt"
STAMP = "--stamp" in sys.argv
STOP = 99
for a_ in sys.argv:
    if a_.startswith("--stop="):
        STOP = int(a_[7:])

CTL = 0
MODBOX = 4096
A1BOX = MODBOX + 24 * 4096
A2BOX = A1BOX + 64 * 4 * 1024
CANDBOX = A2BOX + 4096
YBOX = CANDBOX + 128 * 8192
KVCHK = YBOX + 112 * 8192
OCHK = KVCHK + 1024 * 256
KVBOX = 0x400000
OBOX = KVBOX + 0x400000
DBG = OBOX + 0x200000
WS_BYTES = DBG + (0x800000 if (STAMP or STOP < 99) else 0)
assert OCHK + 2048 * 256 <= KVBOX

sX, sWQ, sWO, sWR, sGA, sUP, sDN, sCC, sWM, sOUT, sWS, sPC = 4, 8, 12, 16, 20, 24, 28, 32, 36, 40, 44, 48
sV, sTB, sHG, sROT, sTAG = 52, 53, 54, 55, 56
sT0, sT1, sT2, sT3, sT4, sT5 = 57, 58, 59, 60, 61, 62
sSPIN = 63
sWOFF = 64
sE_LO = 96
sST = 98
SPIN_MAX = 1 << 16


def srd(b):
    return f"s[{b}:{b+3}]"


HB = 98304
LDS_BYTES = 163840

k = KB()
nstamp = [0]
vSTAMP = 15


def stamp(name):
    if not STAMP:
        return
    k.wait_lg()
    k(f"s_memtime s[{sST}:{sST+1}]")
    k.wait_lg()
    k(f"s_sub_u32 s{sST}, s{sST}, s100")
    k(f"v_writelane_b32 v{vSTAMP}, s{sST}, {nstamp[0]+2}")
    stamp_names.append(name)
    nstamp[0] += 1


stamp_names = []


def finish():
    if STAMP:
        k(f"s_memrealtime s[{sST}:{sST+1}]")
        k.wait_lg()
        k(f"v_writelane_b32 v{vSTAMP}, s{sST}, 1")
        k(f"s_mov_b64 exec, -1")
        k(f"v_mbcnt_lo_u32_b32 v14, -1, 0")
        k(f"v_mbcnt_hi_u32_b32 v14, -1, v14")
        k(f"v_lshlrev_b32 v14, 2, v14")
        k(f"s_lshl_b32 s{sT0}, s2, 2")
        k(f"s_add_u32 s{sT0}, s{sT0}, s{sV}")
        k(f"s_lshl_b32 s{sT0}, s{sT0}, 8")
        k(f"s_add_u32 s{sT0}, s{sT0}, {DBG}")
        k(f"buffer_store_dword v{vSTAMP}, v14, {srd(sWS)}, s{sT0} offen")
    k("s_endpgm")


def bf16r(v, tmp=None):
    k(f"v_cvt_pk_bf16_f32 v{v}, v{v}, v{v}")
    k(f"v_and_b32 v{v}, 0xffff0000, v{v}")


def spin_guard(lab_retry):
    done = k.newlabel("L_ok")
    k(f"s_cbranch_scc1 {done}")
    k(f"s_add_u32 s{sSPIN}, s{sSPIN}, 1")
    k(f"s_cmp_lt_u32 s{sSPIN}, {SPIN_MAX}")
    k(f"s_cbranch_scc1 {lab_retry}")
    k.label(done)


if STAMP:
    k("s_memrealtime s[98:99]")
    k("s_memtime s[100:101]")
for s_, off in ((sCC, 64), (sWM, 72), (sX, 0), (sWQ, 8), (sWS, 96)):
    k(f"s_load_dwordx2 s[{s_}:{s_+1}], s[0:1], {off}")
k("s_cmp_ge_u32 s2, 256")
k("s_cbranch_scc1 L_exit")
k(f"s_getpc_b64 s[{sPC}:{sPC+1}]")
k.raw("L_pc:")
k(f"s_mov_b32 s{sPC+2}, L_code_end-L_pc")
k(f"s_mov_b32 s{sPC+3}, 0x20000")
k(f"s_lshr_b32 s{sT0}, s2, 3")
k(f"s_lshl_b32 s{sT1}, s{sT0}, 11")
k(f"v_lshlrev_b32 v1, 3, v0")
k(f"buffer_load_dwordx2 v[62:63], v1, {srd(sPC)}, s{sT1} offen")
for s_, off in ((sWO, 16), (sWR, 32), (sGA, 40), (sUP, 48), (sDN, 56), (sOUT, 80)):
    k(f"s_load_dwordx2 s[{s_}:{s_+1}], s[0:1], {off}")
for s_, n in ((sCC, 1024), (sWM, 512 * 6144), (sX, 2048 * 1024), (sWQ, 512 * 3072), (sWS, WS_BYTES), (sWO, 512 * 1024),
              (sWR, 1024), (sGA, 512 * 3584), (sUP, 512 * 3584), (sDN, 1792 * 1024), (sOUT, 2048 * 1024)):
    k(f"s_mov_b32 s{s_+2}, {n}")
    k(f"s_mov_b32 s{s_+3}, 0x20000")
vL, vR8, vC8 = 4, 5, 6
k(f"v_lshrrev_b32 v1, 6, v0")
k(f"v_and_b32 v{vL}, 63, v0")
k(f"v_readfirstlane_b32 s{sV}, v1")
k(f"v_lshrrev_b32 v{vR8}, 3, v{vL}")
k(f"v_and_b32 v{vC8}, 7, v{vL}")
k(f"s_and_b32 s{sROT}, s{sT0}, 7")
k(f"s_bfe_u32 s{sTB}, s2, 0x20001")
k(f"s_lshl_b32 s{sTB}, s{sTB}, 3")
k(f"s_add_u32 s{sTB}, s{sTB}, s{sROT}")
k(f"s_and_b32 s{sHG}, s2, 1")
k(f"s_lshl_b32 s{sHG}, s{sHG}, 2")
k(f"s_lshr_b32 s{sT0}, s2, 6")
k(f"s_add_u32 s{sHG}, s{sHG}, s{sT0}")
k(f"s_mov_b32 s{sSPIN}, 0")
vMO, vMC = 7, 8
k(f"v_mul_u32_u24 v{vMO}, {4*6144}, v{vR8}")
k(f"v_lshl_add_u32 v{vMO}, v{vC8}, 4, v{vMO}")
k(f"v_lshlrev_b32 v{vMC}, 3, v{vR8}")
k("s_cmp_ge_u32 s2, 192")
k(f"s_cselect_b32 s{sT0}, 0x40000000, 0")
k(f"v_or_b32 v{vMO}, s{sT0}, v{vMO}")
k(f"s_and_b32 s{sT0}, s2, 3")
k(f"s_lshl_b32 s{sT0}, s{sT0}, 2")
k(f"s_add_u32 s{sT0}, s{sT0}, s{sV}")
k(f"s_lshl_b32 s{sT1}, s{sT0}, 6")
k(f"s_mul_i32 s{sT0}, s{sT0}, {32*6144}")
k(f"s_lshr_b32 s{sT2}, s2, 2")
k(f"s_lshl_b32 s{sT2}, s{sT2}, 7")
k(f"s_add_u32 s{sT0}, s{sT0}, s{sT2}")
vXO = 9
k(f"v_lshlrev_b32 v{vXO}, 10, v{vR8}")
k(f"v_lshl_add_u32 v{vXO}, v{vC8}, 4, v{vXO}")
if STAMP:
    k.wait_lg()
    k(f"v_mov_b32 v{vSTAMP}, 0")
    k(f"v_writelane_b32 v{vSTAMP}, s98, 0")
k.wait_lg()
k(f"s_load_dword s{sTAG}, s[{sWS}:{sWS+1}], {CTL}")
vMW = 16
k(f"buffer_load_dwordx2 v[32:33], v{vMC}, {srd(sCC)}, s{sT1} offen")
for i in range(4):
    tokM = k(f"buffer_load_dwordx4 v[{vMW+4*i}:{vMW+4*i+3}], v{vMO}, {srd(sWM)}, s{sT0} offen")
    if i < 3:
        k(f"s_add_u32 s{sT0}, s{sT0}, 6144")
vXR = 64
k(f"s_lshl_b32 s{sT2}, s{sTB}, 16")
for st in range(2):
    k(f"s_add_u32 s{sT0}, s{sV}, s{sROT}")
    if st:
        k(f"s_add_u32 s{sT0}, s{sT0}, 4")
    k(f"s_and_b32 s{sT0}, s{sT0}, 7")
    k(f"s_lshl_b32 s{sT3+st}, s{sT0}, 12")
    k(f"s_lshl_b32 s{sT0}, s{sT0}, 7")
    k(f"s_add_u32 s{sT0}, s{sT0}, s{sT2}")
    for i in range(8):
        r = vXR + (st * 8 + i) * 4
        k(f"buffer_load_dwordx4 v[{r}:{r+3}], v{vXO}, {srd(sX)}, s{sT0} offen")
        if i < 7:
            k(f"s_add_u32 s{sT0}, s{sT0}, 8192")
sBOXA, sBOXB = sT3, sT4
vWE = {"q": 10, "k": 34, "v": 36}
k(f"v_mul_u32_u24 v1, 3072, v{vR8}")
k(f"v_and_b32 v2, 2, v{vR8}")
k(f"v_xor_b32 v2, v2, v{vC8}")
k(f"v_lshl_add_u32 v10, v2, 4, v1")
k(f"v_xor_b32 v2, 4, v2")
k(f"v_lshl_add_u32 v11, v2, 4, v1")
k(f"v_add_u32 v11, {8*3072-1024}, v11")
k(f"v_add_u32 v34, 1024, v10")
k(f"v_add_u32 v35, 1024, v11")
k(f"v_add_u32 v36, 2048, v10")
k(f"v_add_u32 v37, 2048, v11")
k(f"s_mul_i32 s{sT0}, s{sV}, {16*3072}")
k(f"s_lshl_b32 s{sT1}, s{sHG}, 7")
k(f"s_add_u32 s{sT0}, s{sT0}, s{sT1}")
k(f"s_lshl_b32 s{sT5}, s{sV}, 11")
for p in range(8):
    k(f"s_add_u32 s{sT1}, s{sROT}, {p}")
    k(f"s_and_b32 s{sT1}, s{sT1}, 7")
    k(f"s_mul_i32 s{sT1}, s{sT1}, {64*3072}")
    k(f"s_add_u32 s{sWOFF+p}, s{sT1}, s{sT0}")

GROUPS = [[("k", 0), ("v", 0), ("k", 1), ("v", 1)], [("k", 2), ("v", 2), ("k", 3), ("v", 3)],
          [("k", 4), ("v", 4), ("k", 5), ("v", 5)], [("k", 6), ("v", 6), ("k", 7), ("v", 7)],
          [("q", 4), ("q", 5), ("q", 6), ("q", 7)], [("q", 0), ("q", 1), ("q", 2), ("q", 3)]]
PART = {"k": 0, "v": 1, "q": 2}


def w_dma(g):
    out = []
    for u, (part, p) in enumerate(GROUPS[g]):
        slot = (g % 3) * 4 + u
        out.append(f"s_add_u32 m0, s{sT5}, {slot*8192}")
        out.append(f"buffer_load_dwordx4 v{vWE[part]}, {srd(sWQ)}, s{sWOFF+p} offen lds")
        out.append(f"buffer_load_dwordx4 v{vWE[part]+1}, {srd(sWQ)}, s{sWOFF+p} offen offset:1024 lds")
    return out


vTR, vTR2 = 12, 13


def aW(part, ks):
    return (PART[part] * 16 + ks) * 4


def w_tr(g):
    out = []
    for u, (part, p) in enumerate(GROUPS[g]):
        slot = (g % 3) * 4 + u
        for kk in range(2):
            for jj in range(2):
                off = slot * 8192 + kk * 4096 + jj * 512
                base = vTR
                if off >= 65536:
                    off -= 65536
                    base = vTR2
                a = aW(part, 2 * p + kk) + 2 * jj
                out.append(f"ds_read_b64_tr_b16 a[{a}:{a+1}], v{base} offset:{off}")
    return out


tokG = {}
for g in range(3):
    for s_ in w_dma(g):
        t = k(s_)
    tokG[g] = t
stamp("issued")
k(f"v_lshrrev_b32 v1, 4, v{vL}")
k(f"v_bfe_u32 v2, v{vL}, 2, 2")
k(f"v_lshl_add_u32 v3, v1, 3, v2")
k(f"v_lshlrev_b32 v{vTR}, 7, v3")
k(f"v_and_b32 v1, 1, v1")
k(f"v_lshrrev_b32 v2, 1, v2")
k(f"v_lshl_add_u32 v1, v1, 1, v2")
k(f"v_xor_b32 v1, s{sV}, v1")
k(f"v_lshl_add_u32 v{vTR}, v1, 5, v{vTR}")
k(f"v_and_b32 v1, 3, v{vL}")
k(f"v_lshl_add_u32 v{vTR}, v1, 3, v{vTR}")
k(f"v_add_u32 v{vTR2}, 0x10000, v{vTR}")
k.wait_lg()
k(f"s_mul_i32 s{sTAG}, s{sTAG}, 1664525")
k(f"s_add_u32 s{sTAG}, s{sTAG}, 1013904223")

k("s_cmp_ge_u32 s2, 192")
k("s_cbranch_scc1 L_nomod")
saved_vm = list(k.vm)
c0 = 40
k(f"v_lshlrev_b32 v40, 16, v32")
k(f"v_and_b32 v41, 0xffff0000, v32")
k(f"v_lshlrev_b32 v42, 16, v33")
k(f"v_and_b32 v43, 0xffff0000, v33")
for i in range(4):
    k(f"v_mul_f32 v{44+i}, 0xbfb8aa3b, v{40+i}")
for i in range(4):
    k(f"v_exp_f32 v{44+i}, v{44+i}")
for i in range(4):
    k(f"v_add_f32 v{44+i}, 1.0, v{44+i}")
for i in range(4):
    k(f"v_rcp_f32 v{44+i}, v{44+i}")
for i in range(4):
    k(f"v_mul_f32 v{40+i}, v{40+i}, v{44+i}")
for i in range(4):
    k(f"v_cvt_pk_bf16_f32 v{48+2*i}, v{40+i}, 0")
    k(f"v_cvt_pk_bf16_f32 v{49+2*i}, 0, v{40+i}")
for i in range(4):
    for j in range(8):
        c_ = "0" if i == 0 else f"v{56+j}"
        k(f"v_dot2_f32_bf16 v{56+j}, v{vMW+4*i+j//2}, v{48+2*i+(j&1)}, {c_}")
for j in range(4):
    k(f"v_permlane32_swap_b32 v{56+j}, v{60+j}")
for j in range(4):
    k(f"v_add_f32 v{56+j}, v{56+j}, v{60+j}")
for j in range(2):
    k(f"v_permlane16_swap_b32 v{56+j}, v{58+j}")
for j in range(2):
    k(f"v_add_f32 v{56+j}, v{56+j}, v{58+j}")
k(f"v_lshrrev_b32 v1, 4, v{vL}")
k(f"v_lshlrev_b32 v1, 3, v1")
k(f"v_lshl_add_u32 v1, v{vC8}, 5, v1")
k(f"s_lshl_b32 s{sT0}, s{sV}, 8")
k(f"s_add_u32 s{sT0}, s{sT0}, {HB+4096}")
k(f"v_add_u32 v1, s{sT0}, v1")
for j in range(2):
    k(f"v_add_f32_dpp v{56+j}, v{56+j}, v{56+j} row_ror:8 row_mask:0xf bank_mask:0xf")
k(f"ds_write_b64 v1, v[56:57]")
k(f"v_lshlrev_b32 v2, 2, v{vL}")
k(f"v_add_u32 v2, {HB+4096}, v2")
k.barrier()
k(f"ds_read2st64_b32 v[56:57], v2 offset0:0 offset1:1")
k(f"ds_read2st64_b32 v[58:59], v2 offset0:2 offset1:3")
k(f"s_lshr_b32 s{sT0}, s2, 6")
k(f"s_lshl_b32 s{sT0}, s{sT0}, 15")
k(f"s_bfe_u32 s{sT1}, s2, 0x30002")
k(f"s_lshl_b32 s{sT1}, s{sT1}, 12")
k(f"s_add_u32 s{sT0}, s{sT0}, s{sT1}")
k(f"s_and_b32 s{sT1}, s2, 3")
k(f"s_lshl_b32 s{sT1}, s{sT1}, 10")
k(f"s_add_u32 s{sT0}, s{sT0}, s{sT1}")
k(f"s_bfe_u32 s{sT1}, s2, 0x10005")
k(f"s_lshl_b32 s{sT1}, s{sT1}, 9")
k(f"s_add_u32 s{sT0}, s{sT0}, s{sT1}")
k(f"s_add_u32 s{sT0}, s{sT0}, {MODBOX}")
k(f"s_cmp_lg_u32 s{sV}, 0")
k(f"s_cselect_b32 s{sT1}, 0x40000000, 0")
k(f"v_lshl_add_u32 v2, v{vL}, 3, s{sT1}")
k(f"v_add_f32 v56, v56, v57")
k(f"v_add_f32 v58, v58, v59")
k(f"v_add_f32 v56, v56, v58")
k(f"v_mov_b32 v57, s{sTAG}")
k(f"buffer_store_dwordx2 v[56:57], v2, {srd(sWS)}, s{sT0} offen sc1")
k("s_branch L_moddone")
k.label("L_nomod")
k.raw(f"    buffer_store_dwordx2 v[56:57], v{vMO}, {srd(sWS)}, 0 offen")
k.label("L_moddone")
stamp("mod_pub")

vS = 16
k(f"v_mov_b32 v3, 0x3f803f80")
for i in range(8):
    for st in range(2):
        for j in range(4):
            r = vXR + (st * 8 + i) * 4 + j
            first = st == 0 and j == 0
            k(f"v_dot2_f32_bf16 v{vS+2*i}, v{r}, v3, " + ("0" if first else f"v{vS+2*i}"))
            k(f"v_dot2_f32_bf16 v{vS+2*i+1}, v{r}, v{r}, " + ("0" if first else f"v{vS+2*i+1}"))
for mode in ("quad_perm:[1,0,3,2]", "quad_perm:[2,3,0,1]", "row_half_mirror"):
    for j in range(16):
        k(f"v_add_f32_dpp v{vS+j}, v{vS+j}, v{vS+j} {mode} row_mask:0xf bank_mask:0xf")
k(f"v_lshlrev_b32 v1, 5, v{vR8}")
k(f"s_lshl_b32 s{sT0}, s{sV}, 3")
k(f"s_add_u32 s{sT0}, s{sT0}, {HB}")
k(f"v_add_u32 v1, s{sT0}, v1")
for i in range(8):
    k(f"ds_write_b64 v1, v[{vS+2*i}:{vS+2*i+1}] offset:{i*256}")
k(f"v_lshlrev_b32 v1, 5, v{vL}")
k(f"v_add_u32 v1, {HB}, v1")
k.barrier()
k(f"ds_read_b128 v[16:19], v1")
k(f"ds_read_b128 v[20:23], v1 offset:16")
vXN = 128
for n in range(16):
    for j in range(4):
        r = vXR + n * 4 + j
        k(f"v_lshlrev_b32 v{vXN+n*8+2*j}, 16, v{r}")
        k(f"v_and_b32 v{vXN+n*8+2*j+1}, 0xffff0000, v{r}")
    if n == 1:
        k(f"v_add_f32 v16, v16, v18")
        k(f"v_add_f32 v17, v17, v19")
        k(f"v_add_f32 v20, v20, v22")
        k(f"v_add_f32 v21, v21, v23")
        k(f"v_add_f32 v16, v16, v20")
        k(f"v_add_f32 v17, v17, v21")
        k(f"v_mul_f32 v16, 0x3b000000, v16")
        k(f"v_mul_f32 v17, 0x3b000000, v17")
        k(f"v_fma_f32 v17, -v16, v16, v17")
        k(f"v_max_f32 v17, 0, v17")
        bf16r(17)
        k(f"v_add_f32 v17, 0x3727c5ac, v17")
        bf16r(17)
        k(f"v_sqrt_f32 v17, v17")
        bf16r(16)
        bf16r(17)
        k(f"v_rcp_f32 v18, v17")
        k(f"v_lshlrev_b32 v1, 6, v{vC8}")
        k(f"v_lshl_add_u32 v1, v{vR8}, 3, v1")
        k(f"v_mul_f32 v19, v16, v18")
        k(f"v_add_u32 v1, {HB+2048}, v1")
        k(f"v_sub_f32 v19, 0, v19")
        k(f"ds_write_b64 v1, v[18:19]")
        k(f"v_lshlrev_b32 v1, 6, v{vR8}")
        k(f"v_add_u32 v1, {HB+2048}, v1")
        for q in range(4):
            k(f"ds_read_b128 v[{40+4*q}:{43+4*q}], v1 offset:{16*q}")
for n in range(16):
    i = n & 7
    for j in range(4):
        r = vXN + n * 8 + 2 * j
        k(f"v_pk_fma_f32 v[{r}:{r+1}], v[{r}:{r+1}], v[{40+2*i}:{41+2*i}], v[{40+2*i}:{41+2*i}] op_sel:[0,0,1] op_sel_hi:[1,0,1]")
stamp("xn")

vHW = 38
vHR = 7
HRREG = [7, 8, 9, 2]
k(f"v_xor_b32 v1, v{vR8}, v{vC8}")
k(f"v_lshlrev_b32 v1, 4, v1")
k(f"v_lshl_add_u32 v1, v{vR8}, 10, v1")
k(f"s_lshl_b32 s{sT0}, s{sV}, 7")
k(f"s_add_u32 s{sT0}, s{sT0}, {HB}")
k(f"v_add_u32 v{vHW}, s{sT0}, v1")
k(f"v_xor_b32 v{vHW+1}, 128, v{vHW}")
k(f"v_and_b32 v1, 15, v{vL}")
k(f"v_lshrrev_b32 v3, 4, v{vL}")
k(f"v_xor_b32 v3, v3, v1")
k(f"v_lshlrev_b32 v3, 4, v3")
k(f"v_lshl_add_u32 v3, v1, 10, v3")
k(f"v_add_u32 v{HRREG[0]}, {HB}, v3")
for q in range(1, 4):
    k(f"v_xor_b32 v{HRREG[q]}, {q*64}, v{HRREG[0]}")

k.wait_vm(tokG[0])
k.barrier()
for s_ in w_tr(0):
    k(s_)
k.wait_vm(tokG[1])
k.barrier()
for s_ in w_dma(3):
    tokG[3] = k(s_)
for s_ in w_tr(1):
    k(s_)
k.barrier()
stamp("G01")
vP = 64
k(f"v_lshlrev_b32 v1, 4, v{vL}")
k(f"s_add_u32 s{sBOXA}, s{sBOXA}, {MODBOX}")
k(f"s_add_u32 s{sBOXB}, s{sBOXB}, {MODBOX}")


def poll_loads():
    t = None
    for st, sb in enumerate((sBOXA, sBOXB)):
        for i in range(4):
            r = vP + st * 16 + 4 * i
            t = k(f"buffer_load_dwordx4 v[{r}:{r+3}], v1, {srd(sWS)}, s{sb} offen offset:{i*1024} sc1")
    return t


tokP = poll_loads()
for s_ in w_dma(4):
    tokG[4] = k(s_)
k(f"v_lshrrev_b32 v3, 4, v{vL}")
k(f"v_lshlrev_b32 v3, 10, v3")
k(f"v_and_b32 v32, 15, v{vL}")
k(f"v_lshl_add_u32 v3, v32, 3, v3")
k(f"s_lshl_b32 s{sT0}, s{sV}, 7")
k(f"s_add_u32 s{sT0}, s{sT0}, {HB+512}")
k(f"v_add_u32 v3, s{sT0}, v3")
k(f"v_lshrrev_b32 v32, 2, v{vC8}")
k(f"v_lshlrev_b32 v32, 10, v32")
k(f"v_and_b32 v33, 3, v{vC8}")
k(f"v_lshl_add_u32 v32, v33, 5, v32")
k(f"v_add_u32 v32, s{sT0}, v32")
k(f"v_lshrrev_b32 v33, 5, v{vL}")
k(f"v_cvt_f32_u32 v33, v33")
k.wait_vm(tokP)
k("s_branch L_modchk")
k.label("L_modpoll")
sv = list(k.vm)
poll_loads()
k.force_wait(vm=0)
k.vm = sv
k.label("L_modchk")
k(f"v_xor_b32 v14, s{sTAG}, v{vP+1}")
for n in range(1, 16):
    k(f"v_bitop3_b32 v14, v14, v{vP+2*n+1}, s{sTAG} bitop3:0xf6")
k("v_cmp_ne_u32 vcc, 0, v14")
k("s_cmp_eq_u64 vcc, 0")
spin_guard("L_modpoll")
stamp("mod_in")
vAS = 96
for st in range(2):
    b = vP + st * 16
    for e in (0, 2):
        k(f"v_add_f32 v{b+e}, v{b+e}, v{b+4+e}")
        k(f"v_add_f32 v{b+8+e}, v{b+8+e}, v{b+12+e}")
    k(f"v_add_f32 v{b}, v{b}, v{b+8}")
    k(f"v_add_f32 v{b+1}, v{b+2}, v{b+10}")
    k(f"v_cvt_pk_bf16_f32 v{b+2}, v{b}, v{b+1}")
    k(f"v_lshlrev_b32 v{b}, 16, v{b+2}")
    k(f"v_and_b32 v{b+1}, 0xffff0000, v{b+2}")
    k(f"v_add_f32 v{b}, v{b}, v33")
    k(f"v_add_f32 v{b+1}, v{b+1}, v33")
    k(f"v_cvt_pk_bf16_f32 v{b+2}, v{b}, v{b+1}")
    k(f"v_lshlrev_b32 v{b}, 16, v{b+2}")
    k(f"v_and_b32 v{b+1}, 0xffff0000, v{b+2}")
    k(f"ds_write_b64 v3, v[{b}:{b+1}] offset:{st*4096}")
    for wh in range(2):
        for q in range(2):
            r = vAS + st * 16 + wh * 8 + 4 * q
            k(f"ds_read_b128 v[{r}:{r+3}], v32 offset:{st*4096+wh*2048+16*q}")


def h_stage(st, packed):
    out = []
    for i in range(8):
        r = vXN + (st * 8 + i) * 8
        sa, a_ = vAS + st * 16, vAS + st * 16 + 8
        if packed:
            for j in range(4):
                out.append(f"v_pk_fma_f32 v[{r+2*j}:{r+2*j+1}], v[{r+2*j}:{r+2*j+1}], v[{a_+2*j}:{a_+2*j+1}], v[{sa+2*j}:{sa+2*j+1}]")
        else:
            for j in range(8):
                out.append(f"v_fma_f32 v{r+j}, v{r+j}, v{a_+j}, v{sa+j}")
        for j in range(4):
            out.append(f"v_cvt_pk_bf16_f32 v{r+j}, v{r+2*j}, v{r+2*j+1}")
        out.append(f"ds_write_b128 v{vHW+(i&1)}, v[{r}:{r+3}] offset:{i*8192+st*512}")
    return out


for s_ in h_stage(0, True):
    k(s_)
k.wait_vm(tokG[3])
k.barrier()
stamp("hA")

accK, accV, accQ = 16, 40, 16
accQ = 56


def hfrag(ks, tt):
    if ks >= 8:
        return 128 + ((ks - 8) * 4 + tt) * 4
    return 64 + ((ks & 1) * 4 + tt) * 4


def h_read(ks):
    return [f"ds_read_b128 v[{hfrag(ks,tt)}:{hfrag(ks,tt)+3}], v{HRREG[ks&3]} offset:{tt*16384+(ks>>2)*256}" for tt in range(4)]


def mf16(d, A, B, first):
    c = "0" if first else f"v[{d}:{d+3}]"
    return f"v_mfma_f32_16x16x32_bf16 v[{d}:{d+3}], {A}, {B}, {c}"


def kv_mfma(ks):
    out = []
    for tt in range(4):
        h = f"v[{hfrag(ks,tt)}:{hfrag(ks,tt)+3}]"
        wk, wv = aW("k", ks), aW("v", ks)
        out.append(mf16(accK + 4 * tt, f"a[{wk}:{wk+3}]", h, ks == 0))
        out.append(mf16(accV + 4 * tt, h, f"a[{wv}:{wv+3}]", ks == 0))
    return out


for s_ in h_read(0) + h_read(1):
    k(s_)
fill = h_stage(1, False)
trs = w_tr(2) + w_tr(3)
fi = ti = 0
for ks in range(8):
    mm = kv_mfma(ks)
    nxt = h_read(ks + 2) if ks + 2 < 8 else []
    for n, m in enumerate(mm):
        k(m)
        if n & 1 and nxt:
            k(nxt[n >> 1])
        elif ti < len(trs):
            k(trs[ti]); ti += 1
        for _ in range(2):
            if fi < len(fill):
                k(fill[fi]); fi += 1
while fi < len(fill):
    k(fill[fi]); fi += 1
while ti < len(trs):
    k(trs[ti]); ti += 1
k.wait_vm(tokG[4])
k.barrier()
stamp("kv1")
for s_ in h_read(8) + h_read(9):
    k(s_)
dm = w_dma(5)
trs = w_tr(4)
fi = ti = 0
for ks in range(8, 16):
    mm = kv_mfma(ks)
    nxt = h_read(ks + 2) if ks + 2 < 16 else []
    for n, m in enumerate(mm):
        k(m)
        if n & 1 and nxt:
            k(nxt[n >> 1])
        elif ti < len(trs):
            k(trs[ti]); ti += 1
        if (n & 1) == 0 and fi < len(dm):
            t = k(dm[fi]); fi += 1
            if t is not None:
                tokG[5] = t
stamp("kv2")

accQ = 64
vKO = 96
vQ = 120


def q_mfma(ks, hf):
    wq = aW("q", ks)
    return [mf16(accQ + 4 * tt, f"a[{wq}:{wq+3}]", f"v[{hf(ks,tt)}:{hf(ks,tt)+3}]", ks == 8) for tt in range(4)]


ep = []
ep += [f"s_lshl_b32 s{sT0}, s{sTB}, 5", f"s_lshl_b32 s{sT1}, s{sHG}, 2", f"s_add_u32 s{sT0}, s{sT0}, s{sT1}",
       f"s_add_u32 s{sT0}, s{sT0}, s{sV}",
       f"s_lshl_b32 s{sT3}, s{sT0}, 12", f"s_add_u32 s{sT3}, s{sT3}, {KVBOX}",
       f"s_lshl_b32 s{sT4}, s{sT0}, 8", f"s_add_u32 s{sT4}, s{sT4}, {KVCHK}",
       f"s_mov_b32 s{sE_LO}, 0x0000ffff", f"s_mov_b32 s{sE_LO+1}, 0x0000ffff"]
vOK, vOV, vOC = 1, 3, 32
ep += [f"v_lshlrev_b32 v{vOK}, 4, v{vL}", f"v_lshlrev_b32 v{vOC}, 2, v{vL}",
       f"v_lshrrev_b32 v{vOV}, 5, v{vL}", f"v_lshlrev_b32 v{vOV}, 4, v{vOV}", f"v_and_b32 v33, 15, v{vL}",
       f"v_add_lshl_u32 v{vOV}, v{vOV}, v33, 4"]
for t in range(4):
    for j in range(2):
        ep.append(f"v_mov_b32 v{vKO+8+4*t+2+j}, 0x3f803f80")
for t in range(2):
    for j in range(2):
        ep.append(f"v_cvt_pk_bf16_f32 v{vKO+4*t+j}, v{accK+8*t+2*j}, v{accK+8*t+2*j+1}")
        ep.append(f"v_cvt_pk_bf16_f32 v{vKO+4*t+2+j}, v{accK+8*t+4+2*j}, v{accK+8*t+4+2*j+1}")
for t in range(4):
    for j in range(2):
        ep.append(f"v_cvt_pk_bf16_f32 v{vKO+8+4*t+j}, v{accV+4*t+2*j}, v{accV+4*t+2*j+1}")
for t in range(2):
    for j in range(2):
        ep.append(f"v_permlane16_swap_b32 v{vKO+4*t+j}, v{vKO+4*t+2+j}")
for t in range(2):
    ep.append(f"buffer_store_dwordx4 v[{vKO+4*t}:{vKO+4*t+3}], v{vOK}, {srd(sWS)}, s{sT3} offen offset:{t*1024} sc1")
for t in range(4):
    for j in range(2):
        ep.append(f"v_permlane16_swap_b32 v{vKO+8+4*t+j}, v{vKO+8+4*t+2+j}")
for t in range(4):
    for j in range(2):
        ep.append(f"v_permlane32_swap_b32 v{vKO+8+4*t+j}, v{vKO+8+4*t+2+j}")
ep.append(f"v_add3_u32 v33, v{vKO}, v{vKO+1}, s{sTAG}")
for n in range(1, 12):
    ep.append(f"v_add3_u32 v33, v{vKO+2*n}, v{vKO+2*n+1}, v33")
ep.append(f"buffer_store_dword v33, v{vOC}, {srd(sWS)}, s{sT4} offen sc1")
qm = []
for ks in range(8, 16):
    qm += q_mfma(ks, hfrag)
seq = interleave(qm[:24], ep, per=3)
for s_ in seq:
    k(s_)
k(f"s_mov_b64 exec, s[{sE_LO}:{sE_LO+1}]")
for t in range(4):
    k(f"buffer_store_dwordx4 v[{vKO+8+4*t}:{vKO+8+4*t+3}], v{vOV}, {srd(sWS)}, s{sT3} offen offset:{2048+t*512} sc1")
k(f"s_mov_b64 exec, -1")
stamp("kv_pub")
k.wait_vm(tokG[5])
k.barrier()


def hfrag2(ks, tt):
    return 16 + ((ks % 3) * 4 + tt) * 4


def h_read2(ks):
    return [f"ds_read_b128 v[{hfrag2(ks,tt)}:{hfrag2(ks,tt)+3}], v{HRREG[ks&3]} offset:{tt*16384+(ks>>2)*256}" for tt in range(4)]


k(f"v_mov_b32 v10, v{vOC}")
vOC = 10
ONES = 0x3f803f80
sONE = 58


def RB(bb):
    return vKO if bb == 4 else 128 + 24 * bb


def Kt(a):
    r = RB(a >> 1) + 4 * (a & 1)
    return f"v[{r}:{r+3}]"


def Vt(a, s_):
    r = RB(a >> 1) + 8 + 8 * (a & 1) + 4 * s_
    return f"v[{r}:{r+3}]"


vCHK = 224
sKB = 64


def kv_addr():
    out = []
    for bb in range(4):
        out += [f"s_sub_i32 s{sT0}, s{sTB}, {4-bb}", f"s_max_i32 s{sT0}, s{sT0}, 0", f"s_sub_u32 s{sT0}, s{sTB}, s{sT0}",
                f"s_lshl_b32 s{sT5}, s{sT0}, 17", f"s_sub_u32 s{sKB+bb}, s{sT3}, s{sT5}",
                f"s_lshl_b32 s{sT5}, s{sT0}, 13", f"s_sub_u32 s{sKB+4+bb}, s{sT4}, s{sT5}"]
    return out


def k_loads(bb):
    return [f"buffer_load_dwordx4 v[{RB(bb)+4*t}:{RB(bb)+4*t+3}], v{vOK}, {srd(sWS)}, s{sKB+bb} offen offset:{t*1024} sc1" for t in range(2)] + \
           [f"buffer_load_dword v{vCHK+bb}, v{vOC}, {srd(sWS)}, s{sKB+4+bb} offen sc1"]


def v_loads(bb):
    return [f"s_mov_b64 exec, s[{sE_LO}:{sE_LO+1}]"] + \
           [f"buffer_load_dwordx4 v[{RB(bb)+8+4*t}:{RB(bb)+8+4*t+3}], v{vOV}, {srd(sWS)}, s{sKB+bb} offen offset:{2048+t*512} sc1" for t in range(4)] + \
           ["s_mov_b64 exec, -1"]


def v_ones(bb):
    return [f"v_mov_b64 v[{RB(bb)+8+2*j}:{RB(bb)+9+2*j}], s[{sONE}:{sONE+1}]" for j in range(8)]


trs = w_tr(5)
pre = trs[:4] + h_read2(0) + trs[4:8] + h_read2(1) + trs[8:]
for s_ in interleave(qm[24:], pre, per=3):
    k(s_)
for s_ in kv_addr():
    k(s_)
k(f"s_mov_b32 s{sONE}, {ONES:#x}")
k(f"s_mov_b32 s{sONE+1}, {ONES:#x}")
ORDER = [3, 2, 1, 0]
for ks in range(8):
    mm = q_mfma(ks, hfrag2)
    nxt = h_read2(ks + 2) if ks + 2 < 8 else []
    bb = ORDER[ks >> 1]
    ex = (v_ones(bb)[:4] if (ks & 1) == 0 else v_ones(bb)[4:])
    for n, m in enumerate(mm):
        if nxt:
            k(nxt[n])
        k(m)
        k(ex[n])
    if ks & 1:
        for s_ in k_loads(bb) + v_loads(bb):
            k(s_)
QS = 0x3eb8aa3b
vPM = 240
k(f"v_mov_b32 v248, 0xffff")
k.barrier()
for j in range(16):
    k(f"v_mul_f32 v{accQ+j}, {QS:#x}, v{accQ+j}")
for t in range(2):
    for j in range(2):
        k(f"v_cvt_pk_bf16_f32 v{vQ+4*t+j}, v{accQ+8*t+2*j}, v{accQ+8*t+2*j+1}")
        k(f"v_cvt_pk_bf16_f32 v{vQ+4*t+2+j}, v{accQ+8*t+4+2*j}, v{accQ+8*t+4+2*j+1}")
for t in range(2):
    for j in range(2):
        k(f"v_permlane16_swap_b32 v{vQ+4*t+j}, v{vQ+4*t+2+j}")
stamp("q_done")

k.wait_vm()
k("s_branch L_kvchk")
k.label("L_kvpoll")
for bb in ORDER:
    for s_ in k_loads(bb) + v_loads(bb):
        k(s_)
k.wait_vm()
k.label("L_kvchk")
for n in range(12):
    for bb in range(4):
        c_ = f"s{sTAG}" if n == 0 else f"v{228+bb}"
        k(f"v_add3_u32 v{228+bb}, v{RB(bb)+2*n}, v{RB(bb)+2*n+1}, {c_}")
k(f"v_xor_b32 v228, v228, v{vCHK}")
for bb in range(1, 4):
    k(f"v_bitop3_b32 v228, v228, v{228+bb}, v{vCHK+bb} bitop3:0xf6")
k("v_cmp_ne_u32 vcc, 0, v228")
k("s_cmp_eq_u64 vcc, 0")
spin_guard("L_kvpoll")
stamp("kv_in")
k(f"s_cmp_ge_u32 s{sTB}, 4")
k("s_cbranch_scc1 L_nofix")
for j in range(4):
    k(f"v_readlane_b32 s{64+j}, v{RB(0)+j}, 0")
    k(f"v_readlane_b32 s{68+j}, v{RB(0)+j}, 32")
for j in range(4):
    k(f"v_mov_b32 v{228+j}, s{68+j}")
k("s_mov_b64 exec, 0xffffffff")
for j in range(4):
    k(f"v_mov_b32 v{228+j}, s{64+j}")
k("s_mov_b64 exec, -1")
for bb in range(4):
    if bb:
        k(f"s_cmp_ge_u32 s{sTB}, {4-bb}")
        k("s_cbranch_scc1 L_nofix")
    for j in range(4):
        k(f"v_mov_b64 v[{RB(bb)+2*j}:{RB(bb)+2*j+1}], v[{228+2*(j&1)}:{229+2*(j&1)}]")
    for j in range(8):
        k(f"v_mov_b64 v[{RB(bb)+8+2*j}:{RB(bb)+9+2*j}], 0")
k.label("L_nofix")
sM = 64
for r in range(16):
    m = 0
    for l in range(64):
        key = (r & 3) + 8 * (r >> 2) + 4 * (l >> 5)
        if key <= (l & 31):
            m |= 1 << l
    k(f"s_mov_b32 s{sM+2*r}, {m & 0xffffffff:#x}")
    k(f"s_mov_b32 s{sM+2*r+1}, {m >> 32:#x}")

SB = [16, 32, 48]
MG = [64, 80]
vCM = 224
vMX = [250, 252]


def mf32(d, A, B, C, acc=False):
    f = "a" if acc else "v"
    return f"v_mfma_f32_32x32x16_bf16 {f}[{d}:{d+15}], {A}, {B}, {C}"


def Qf(qt):
    return f"v[{vQ+4*qt}:{vQ+4*qt+3}]"


def max_ops(b, qt, first):
    out = []
    for j in range(8):
        m = vMX[qt] + (j & 1)
        if first and j < 2:
            out.append(f"v_max_f32 v{m}, v{b+2*j}, v{b+2*j+1}")
        else:
            out.append(f"v_max3_f32 v{m}, v{b+2*j}, v{b+2*j+1}, v{m}")
    return out


jobs = []
for qt in range(2):
    jobs += [(qt + 8, qt, "diag"), (qt, qt, "far")] + [(a, qt, "full") for a in range(qt + 1, qt + 8)]
bufof = []
nb = 0
for a, qt, kind in jobs:
    if kind == "diag":
        bufof.append(MG[qt])
    else:
        bufof.append(SB[nb % 3]); nb += 1
pm = []
for j in range(8):
    pm.append(f"v_cndmask_b32 v{vPM+j}, 0, v248, s[{sM+4*j}:{sM+4*j+1}]")
    pm.append(f"v_cndmask_b32 v{vPM+j}, v{vPM+j}, -1, s[{sM+4*j+2}:{sM+4*j+3}]")


def p1_mfma(n):
    a, qt, kind = jobs[n]
    return mf32(bufof[n], Kt(a), Qf(qt), "0")


def p1_valu(n):
    a, qt, kind = jobs[n]
    if kind == "diag":
        return []
    if kind == "far":
        o = [f"v_cndmask_b32 v{MG[qt]+r}, v{bufof[n]+r}, v{MG[qt]+r}, s[{sM+2*r}:{sM+2*r+1}]" for r in range(16)]
        return o + max_ops(MG[qt], qt, True)
    return max_ops(bufof[n], qt, False)


def row_max_finish(qt):
    m = vMX[qt]
    return [f"v_max_f32 v{m}, v{m}, v{m+1}", f"v_mov_b32 v{m+1}, v{m}", f"v_permlane32_swap_b32 v{m}, v{m+1}",
            f"v_max_f32 v{m}, v{m}, v{m+1}", f"v_sub_f32 v{m}, 0, v{m}", f"v_mov_b32 v{m+1}, v{m}"]


def cm_fill(qt):
    return [f"v_mov_b64 v[{vCM+2*j}:{vCM+2*j+1}], v[{vMX[qt]}:{vMX[qt]+1}]" for j in range(8)]


k(p1_mfma(0)); k(p1_mfma(1)); k(p1_mfma(2))
for s_ in pm:
    k(s_)
issued = 3
for n in range(len(jobs)):
    va = p1_valu(n)
    while issued < len(jobs) and sum(1 for x in range(n + 1, issued) if jobs[x][2] != "diag") < 2 and (va or jobs[issued][2] == "diag"):
        k(p1_mfma(issued)); issued += 1
    for s_ in va:
        k(s_)
    if n == 8:
        for s_ in row_max_finish(0) + cm_fill(0):
            k(s_)
for s_ in row_max_finish(1):
    k(s_)
stamp("pass1")

sQT, sQR = 57, 62
sROLE = 101
pf = []
vWO, vGU, vDN, vBX, vXR2, vWR = 11, 12, 13, 7, 8, 9
pf_setup = [
    f"s_and_b32 s{sQT}, s{sHG}, 1", f"s_lshl_b32 s{sT1}, s{sTB}, 1", f"s_add_u32 s{sQT}, s{sQT}, s{sT1}",
    f"s_lshr_b32 s{sQR}, s{sHG}, 1",
    f"v_lshrrev_b32 v2, 4, v{vL}", f"v_and_b32 v14, 15, v{vL}", f"v_lshlrev_b32 v{vWO}, 2, v2", f"v_xor_b32 v14, v14, v{vWO}",
    f"v_lshlrev_b32 v14, 4, v14", f"v_lshl_add_u32 v{vWO}, v2, 10, v14",
    f"s_bfe_u32 s{sT1}, s2, 0x40003", f"s_lshr_b32 s{sT2}, s2, 7", f"s_mul_i32 s{sT2}, s{sT2}, 7",
    f"s_and_b32 s{sROLE}, s2, 7", f"s_mul_i32 s{sROLE}, s{sROLE}, 14", f"s_add_u32 s{sROLE}, s{sROLE}, s{sT2}",
    f"s_cmp_lt_u32 s{sT1}, 7", f"s_cselect_b32 s{sT2}, 0, 0x40000000", f"s_cselect_b32 s{sT1}, s{sT1}, 0",
    f"s_add_u32 s{sROLE}, s{sROLE}, s{sT1}",
    f"v_lshrrev_b32 v2, 1, v{vL}", f"v_mul_u32_u24 v{vGU}, 3584, v2", f"v_and_b32 v2, 1, v{vL}",
    f"v_lshl_add_u32 v{vGU}, v2, 4, v{vGU}", f"v_or_b32 v{vGU}, s{sT2}, v{vGU}",
    f"v_lshlrev_b32 v{vDN}, 2, v0", f"v_or_b32 v{vDN}, s{sT2}, v{vDN}",
    f"v_lshrrev_b32 v2, 5, v{vL}", f"v_lshlrev_b32 v{vBX}, 15, v2", f"v_bfe_u32 v2, v{vL}, 4, 1", f"v_lshl_add_u32 v{vBX}, v2, 9, v{vBX}",
    f"v_and_b32 v2, 15, v{vL}", f"v_lshl_add_u32 v{vBX}, v2, 4, v{vBX}",
    f"v_and_b32 v2, 31, v{vL}", f"v_lshlrev_b32 v{vXR2}, 10, v2", f"v_lshrrev_b32 v2, 5, v{vL}", f"v_lshlrev_b32 v{vWR}, 3, v2",
    f"v_add_u32 v{vXR2}, v{vXR2}, v{vWR}",
]
sP0, sP1 = 58, 59
pf.append([f"s_lshl_b32 s{sP0}, s{sV}, 17", f"s_lshl_b32 s{sP1}, s{sQR}, 8", f"s_add_u32 s{sP0}, s{sP0}, s{sP1}",
           f"s_lshl_b32 s{sP1}, s{sV}, 15"])
for n in range(32):
    pf.append([f"s_add_u32 m0, s{sP1}, {n*1024}", f"buffer_load_dwordx4 v{vWO}, {srd(sWO)}, s{sP0} offen lds",
               f"s_add_u32 s{sP0}, s{sP0}, 4096"])
GU = 131072
pf.append([f"s_mul_i32 s{sP0}, s{sV}, {128*3584}", f"s_lshl_b32 s{sP1}, s{sROLE}, 5", f"s_add_u32 s{sP0}, s{sP0}, s{sP1}",
           f"s_lshl_b32 s{sP1}, s{sV}, 13"])
for n in range(4):
    pf.append([f"s_add_u32 m0, s{sP1}, {GU+n*1024}", f"buffer_load_dwordx4 v{vGU}, {srd(sGA)}, s{sP0} offen lds"])
    pf.append([f"s_add_u32 m0, s{sP1}, {GU+4096+n*1024}", f"buffer_load_dwordx4 v{vGU}, {srd(sUP)}, s{sP0} offen lds",
               f"s_add_u32 s{sP0}, s{sP0}, {32*3584}"])
aDN, aBX, aXR, aWR = 128, 144, 160, 168
pf.append([f"s_lshl_b32 s{sP0}, s{sROLE}, 14"])
for i in range(16):
    pf.append([f"buffer_load_dword a{aDN+i}, v{vDN}, {srd(sDN)}, s{sP0} offen offset:{(i&3)*1024}"] +
              ([f"s_add_u32 s{sP0}, s{sP0}, 4096"] if (i & 3) == 3 else []))
pf.append([f"s_lshl_b32 s{sP0}, s{sQT}, 15", f"s_lshl_b32 s{sP1}, s{sQR}, 8", f"s_add_u32 s{sP0}, s{sP0}, s{sP1}",
           f"s_lshl_b32 s{sT3}, s{sV}, 6", f"s_add_u32 s{sP0}, s{sP0}, s{sT3}", f"s_add_u32 s{sP1}, s{sP1}, s{sT3}"])
for i in range(4):
    pf.append([f"buffer_load_dwordx2 a[{aXR+2*i}:{aXR+2*i+1}], v{vXR2}, {srd(sX)}, s{sP0} offen offset:{16*i}"])
for i in range(4):
    pf.append([f"buffer_load_dwordx2 a[{aWR+2*i}:{aWR+2*i+1}], v{vWR}, {srd(sWR)}, s{sP1} offen offset:{16*i}"])
for s_ in pf_setup:
    k(s_)

aO = [192, 208]
p2 = []


def exp_cvt(b):
    o = []
    for j in range(8):
        o += [f"v_exp_f32 v{b+2*j}, v{b+2*j}", f"v_exp_f32 v{b+2*j+1}, v{b+2*j+1}"]
        if j:
            o.append(f"v_cvt_pk_bf16_f32 v{b+j-1}, v{b+2*j-2}, v{b+2*j-1}")
    o.append(None)
    o.append(f"v_cvt_pk_bf16_f32 v{b+7}, v{b+14}, v{b+15}")
    return o


def o_finish(qt):
    b = MG[qt]
    o = [f"v_accvgpr_read_b32 v{b+8}, a{aO[qt]+8}"]
    o += [f"v_accvgpr_read_b32 v{b+j}, a{aO[qt]+j}" for j in range(8)]
    o.insert(2, f"v_rcp_f32 v{b+8}, v{b+8}")
    o += [f"v_mul_f32 v{b+j}, v{b+j}, v{b+8}" for j in range(8)]
    o += [f"v_cvt_pk_bf16_f32 v{b+j}, v{b+2*j}, v{b+2*j+1}" for j in range(4)]
    o += [f"s_lshl_b32 s{sT3}, s{sTB}, 6", f"s_lshl_b32 s{sT4}, s{sHG}, 2", f"s_add_u32 s{sT3}, s{sT3}, s{sT4}",
          f"s_add_u32 s{sT3}, s{sT3}, s{sV}", f"s_lshl_b32 s{sT4}, s{sT3}, 8", f"s_lshl_b32 s{sT3}, s{sT3}, 10",
          f"s_add_u32 s{sT3}, s{sT3}, {OBOX+qt*32768}", f"s_add_u32 s{sT4}, s{sT4}, {OCHK+qt*8192}"]
    o += [f"buffer_store_dwordx4 v[{b}:{b+3}], v{vOK}, {srd(sWS)}, s{sT3} offen sc1",
          f"v_add3_u32 v{b+8}, v{b}, v{b+1}, s{sTAG}", f"v_add3_u32 v{b+8}, v{b+2}, v{b+3}, v{b+8}",
          f"buffer_store_dword v{b+8}, v{vOC}, {srd(sWS)}, s{sT4} offen sc1"]
    return o


CM = f"v[{vCM}:{vCM+15}]"
nb = 0
pend = []
for qt in range(2):
    full = list(range(qt + 1, qt + 8))
    bufs = [SB[(nb + i) % 3] for i in range(7)]
    nb += 7
    AO = f"a[{aO[qt]}:{aO[qt]+15}]"
    b = MG[qt]
    body = [f"v_add_f32 v{b+r}, v{b+r}, v{vMX[qt]}" for r in range(16)]
    if qt == 1:
        body = body[:8] + cm_fill(1) + body[8:]
    body += exp_cvt(b)
    body += [f"v_bfi_b32 v{b+8+j}, v{vPM+j}, 0, v{b+j}" for j in range(8)]
    body += [f"v_and_b32 v{b+j}, v{vPM+j}, v{b+j}" for j in range(8)]
    ins_at = {}
    for i, m in enumerate(pend):
        ins_at[2 + 4 * i] = m
    ins_at[30] = mf32(bufs[0], Kt(full[0]), Qf(qt), CM)
    if qt == 1:
        fin = o_finish(0)
    for i, s_ in enumerate(body):
        if i in ins_at:
            p2.append(ins_at[i])
        p2.append(s_)
    if qt == 1:
        p2 += fin
    pend = [mf32(aO[qt], Vt(qt + 8, 0), f"v[{b}:{b+3}]", "0", True), mf32(aO[qt], Vt(qt + 8, 1), f"v[{b+4}:{b+7}]", AO, True),
            mf32(aO[qt], Vt(qt, 0), f"v[{b+8}:{b+11}]", AO, True), mf32(aO[qt], Vt(qt, 1), f"v[{b+12}:{b+15}]", AO, True)]
    for i, a in enumerate(full):
        body = exp_cvt(bufs[i])
        ms = []
        if i + 1 < 7:
            ms.append(mf32(bufs[i + 1], Kt(full[i + 1]), Qf(qt), CM))
        ms += pend
        step = max(1, 24 // len(ms))
        ins_at = {2 + step * n if len(ms) < 5 else 1 + 5 * n: m for n, m in enumerate(ms)}
        for n, s_ in enumerate(body):
            if n in ins_at:
                p2.append(ins_at[n])
            if n in (6, 12, 18):
                p2.append(None)
            p2.append(s_)
        bb_ = bufs[i]
        pend = [mf32(aO[qt], Vt(a, 0), f"v[{bb_}:{bb_+3}]", AO, True), mf32(aO[qt], Vt(a, 1), f"v[{bb_+4}:{bb_+7}]", AO, True)]
p2 += pend
nslots = sum(1 for x in p2 if x is None)
pi = 0
slot = 0
for s_ in p2:
    if s_ is None:
        slot += 1
        want = (len(pf) * slot + nslots - 1) // nslots
        while pi < min(want, len(pf)):
            for x in pf[pi]:
                k(x)
            pi += 1
            if len(k.vm) > 56:
                k.force_wait(vm=40)
    else:
        k(s_)
assert pi == len(pf)
k(f"s_lshl_b32 s{sP0}, s{sQR}, 1")
k(f"s_lshr_b32 s{sP1}, s{sV}, 1")
k(f"s_add_u32 s{sP0}, s{sP0}, s{sP1}")
k(f"s_lshl_b32 s{sP0}, s{sP0}, 12")
k(f"s_and_b32 s{sP1}, s{sV}, 1")
k(f"s_lshl_b32 s{sP1}, s{sP1}, 8")
k(f"s_add_u32 s{sP0}, s{sP0}, s{sP1}")
k(f"s_add_u32 s{sP0}, s{sP0}, {MODBOX+32768}")
vB2 = 16


def box2_loads():
    for i in range(4):
        k(f"buffer_load_dwordx4 v[{vB2+4*i}:{vB2+4*i+3}], v{vBX}, {srd(sWS)}, s{sP0} offen offset:{i*1024} sc1")


for s_ in o_finish(1):
    k(s_)
stamp("attn")
box2_loads()

vWB = [128, 129, 130, 131]
vOB = [132, 133, 134, 135]
k(f"v_bfe_u32 v2, v{vL}, 2, 2")
k(f"v_lshrrev_b32 v14, 5, v{vL}")
k(f"v_lshl_add_u32 v14, v14, 2, v2")
k(f"v_lshlrev_b32 v14, 8, v14")
k(f"v_xor_b32 v2, s{sV}, v2")
k(f"v_lshl_add_u32 v14, v2, 6, v14")
k(f"v_bfe_u32 v2, v{vL}, 4, 1")
k(f"v_lshl_add_u32 v14, v2, 5, v14")
k(f"v_and_b32 v2, 3, v{vL}")
k(f"v_lshl_add_u32 v14, v2, 3, v14")
for g in range(4):
    k(f"s_add_u32 s{sT3}, s{sV}, {g}")
    k(f"s_and_b32 s{sT3}, s{sT3}, 3")
    k(f"s_lshl_b32 s{sT4}, s{sT3}, 15")
    k(f"v_add_u32 v{vWB[g]}, s{sT4}, v14")
    k(f"s_lshl_b32 s{sT4}, s{sT3}, 13")
    k(f"s_add_u32 s{sT4}, s{sT4}, {GU}")
    k(f"v_add_u32 v{vOB[g]}, s{sT4}, v{vOK}")
k(f"v_lshrrev_b32 v14, 5, v{vL}")
k(f"v_lshlrev_b32 v14, 9, v14")
k(f"v_and_b32 v2, 31, v{vL}")
k(f"v_lshl_add_u32 v14, v2, 3, v14")
k(f"s_lshl_b32 s{sT4}, s{sV}, 13")
k(f"s_add_u32 s{sT4}, s{sT4}, {GU}")
k(f"v_add_u32 v136, s{sT4}, v14")
k.wait_vm()
k.barrier()
stamp("pf_in")
aGU = 224
for m in range(2):
    for ks in range(4):
        for jj in range(2):
            a = aGU + (m * 4 + ks) * 4 + 2 * jj
            k(f"ds_read_b64_tr_b16 a[{a}:{a+1}], v136 offset:{m*4096+ks*1024+jj*256}")
wo_tr = []
for n in range(32):
    for jj in range(2):
        wo_tr.append(f"ds_read_b64_tr_b16 a[{4*n+2*jj}:{4*n+2*jj+1}], v{vWB[n>>3]} offset:{(n&7)*4096+jj*2048}")
for s_ in wo_tr[:16]:
    k(s_)
k("s_branch L_b2chk")
k.label("L_b2poll")
box2_loads()
k.wait_vm()
k.label("L_b2chk")
k(f"v_xor_b32 v14, s{sTAG}, v{vB2+1}")
for n in range(1, 8):
    k(f"v_bitop3_b32 v14, v14, v{vB2+2*n+1}, s{sTAG} bitop3:0xf6")
k("v_cmp_ne_u32 vcc, 0, v14")
k("s_cmp_eq_u64 vcc, 0")
spin_guard("L_b2poll")
b = vB2
tb_ = []
for e in (0, 2):
    tb_ += [f"v_add_f32 v{b+e}, v{b+e}, v{b+4+e}", f"v_add_f32 v{b+8+e}, v{b+8+e}, v{b+12+e}"]
tb_ += [f"v_add_f32 v{b}, v{b}, v{b+8}", f"v_add_f32 v{b+1}, v{b+2}, v{b+10}",
        f"v_lshrrev_b32 v2, 4, v{vL}", f"v_cmp_eq_u32 vcc, 2, v2", f"v_cvt_pk_bf16_f32 v{b+2}, v{b}, v{b+1}",
        f"v_lshlrev_b32 v{b}, 16, v{b+2}", f"v_cndmask_b32 v14, 0, 1.0, vcc", f"v_and_b32 v{b+1}, 0xffff0000, v{b+2}",
        f"v_add_f32 v{b}, v{b}, v14", f"v_add_f32 v{b+1}, v{b+1}, v14", f"v_cvt_pk_bf16_f32 v{b+2}, v{b}, v{b+1}",
        f"v_lshlrev_b32 v{b}, 16, v{b+2}", f"v_and_b32 v{b+1}, 0xffff0000, v{b+2}",
        f"v_lshlrev_b32 v2, 3, v{vL}", f"v_add_u32 v2, s{sT4}, v2",
        f"v_lshrrev_b32 v14, 5, v{vL}", f"v_lshlrev_b32 v14, 4, v14", f"v_add_u32 v14, s{sT4}, v14"]
for s_ in interleave(tb_, wo_tr[16:], per=2):
    k(s_)
vO4, vOCK = 32, 64
k(f"s_lshl_b32 s{sT3}, s{sQT}, 5")
k(f"s_lshl_b32 s{sP0}, s{sV}, 3")
k(f"s_add_u32 s{sT3}, s{sT3}, s{sP0}")
k(f"s_lshl_b32 s{sP0}, s{sT3}, 10")
k(f"s_add_u32 s{sP0}, s{sP0}, {OBOX}")
k(f"s_add_u32 s{sP1}, s{sP0}, 4096")
k(f"s_lshl_b32 s{sT3}, s{sT3}, 8")
k(f"s_add_u32 s{sT3}, s{sT3}, {OCHK}")


def o_loads():
    for n in range(8):
        k(f"buffer_load_dwordx4 v[{vO4+4*n}:{vO4+4*n+3}], v{vOK}, {srd(sWS)}, s{sP0 if n < 4 else sP1} offen offset:{(n&3)*1024} sc1")
        k(f"buffer_load_dword v{vOCK+n}, v{vOC}, {srd(sWS)}, s{sT3} offen offset:{n*256} sc1")


o_loads()
k(f"ds_write_b64 v2, v[{b}:{b+1}]")
vGA, vSB, vA2, vGB, vW2, vX1 = 144, 160, 176, 192, 208, 224
for sel, base in enumerate((vGA, vSB, vA2, vGB)):
    for q in range(4):
        k(f"ds_read_b128 v[{base+4*q}:{base+4*q+3}], v14 offset:{sel*128+q*32}")
for i in range(8):
    k(f"v_accvgpr_read_b32 v2, a{aXR+i}")
    k(f"v_accvgpr_read_b32 v14, a{aWR+i}")
    k(f"v_lshlrev_b32 v{vX1+2*i}, 16, v2")
    k(f"v_and_b32 v{vX1+2*i+1}, 0xffff0000, v2")
    k(f"v_lshlrev_b32 v{vW2+2*i}, 16, v14")
    k(f"v_and_b32 v{vW2+2*i+1}, 0xffff0000, v14")
vC = 138
k(f"v_mul_f32 v{vC+1}, v{vSB}, v{vW2}")
for r in range(1, 16):
    k(f"v_fmac_f32 v{vC+1}, v{vSB+r}, v{vW2+r}")
for r in range(16):
    k(f"v_mul_f32 v{vW2+r}, v{vW2+r}, v{vA2+r}")
k(f"v_add_f32 v{vC}, v{vW2}, v{vW2+1}")
for r in range(2, 16):
    k(f"v_add_f32 v{vC}, v{vC}, v{vW2+r}")
stamp("tables")
k.wait_vm()
k("s_branch L_ochk")
k.label("L_opoll")
o_loads()
k.wait_vm()
k.label("L_ochk")
for n in range(8):
    k(f"v_add3_u32 v{72+n}, v{vO4+4*n}, v{vO4+4*n+1}, s{sTAG}")
for n in range(8):
    k(f"v_add3_u32 v{72+n}, v{vO4+4*n+2}, v{vO4+4*n+3}, v{72+n}")
k(f"v_xor_b32 v14, v72, v{vOCK}")
for n in range(1, 8):
    k(f"v_bitop3_b32 v14, v14, v{72+n}, v{vOCK+n} bitop3:0xf6")
k("v_cmp_ne_u32 vcc, 0, v14")
k("s_cmp_eq_u64 vcc, 0")
spin_guard("L_opoll")
stamp("o_in")
vD = 80
DD = f"v[{vD}:{vD+15}]"
for n in range(8):
    k(f"ds_write_b128 v{vOB[0]}, v[{vO4+4*n}:{vO4+4*n+3}] offset:{n*1024}")
    if n < 4:
        k(mf32(vD, f"a[{4*n}:{4*n+3}]", f"v[{vO4+4*n}:{vO4+4*n+3}]", "0" if n == 0 else DD))
k.barrier()
vRG = 96


def o_read(n):
    r = vRG + (n & 7) * 4
    return f"ds_read_b128 v[{r}:{r+3}], v{vOB[n>>3]} offset:{(n&7)*1024}"


vDW = 240
sPL, sPH = 64, 65
idle = [f"s_mov_b32 s{sPL}, 0x05040100", f"s_mov_b32 s{sPH}, 0x07060302"]
for i in range(8):
    idle += [f"v_accvgpr_read_b32 v2, a{aDN+2*i}", f"v_accvgpr_read_b32 v14, a{aDN+2*i+1}",
             f"v_perm_b32 v{vDW+i}, v14, v2, s{sPL}", f"v_perm_b32 v{vDW+8+i}, v14, v2, s{sPH}"]
ii = 0
for n in range(4, 32):
    if n < 8:
        k(o_read(8 + 2 * (n - 4))); k(o_read(9 + 2 * (n - 4)))
        B = f"v[{vO4+4*n}:{vO4+4*n+3}]"
    else:
        B = f"v[{vRG+(n&7)*4}:{vRG+(n&7)*4+3}]"
    k(mf32(vD, f"a[{4*n}:{4*n+3}]", B, DD))
    if n >= 8 and n + 8 < 32:
        k(o_read(n + 8))
    if n >= 8:
        for _ in range(2):
            if ii < len(idle):
                k(idle[ii]); ii += 1
assert ii == len(idle)
k(f"s_lshl_b32 s{sT3}, s{sV}, 10")
k(f"v_add_u32 v2, s{sT3}, v{vOK}")
k(f"ds_write_b64 v2, v[{vC}:{vC+1}] offset:4096")
for j in range(8):
    k(f"v_pk_fma_f32 v[{vX1+2*j}:{vX1+2*j+1}], v[{vD+2*j}:{vD+2*j+1}], v[{vGA+2*j}:{vGA+2*j+1}], v[{vX1+2*j}:{vX1+2*j+1}]")
k(f"v_pk_add_f32 v[16:17], v[{vX1}:{vX1+1}], v[{vX1+2}:{vX1+3}]")
k(f"v_pk_mul_f32 v[18:19], v[{vX1}:{vX1+1}], v[{vX1}:{vX1+1}]")
k(f"v_pk_mul_f32 v[20:21], v[{vX1}:{vX1+1}], v[{vW2}:{vW2+1}]")
for j in range(1, 8):
    x_ = f"v[{vX1+2*j}:{vX1+2*j+1}]"
    if j > 1:
        k(f"v_pk_add_f32 v[16:17], v[16:17], {x_}")
    k(f"v_pk_fma_f32 v[18:19], {x_}, {x_}, v[18:19]")
    k(f"v_pk_fma_f32 v[20:21], {x_}, v[{vW2+2*j}:{vW2+2*j+1}], v[20:21]")
k(f"v_add_f32 v16, v16, v17")
k(f"v_add_f32 v17, v18, v19")
k(f"v_add_f32 v18, v20, v21")
k(f"ds_write_b128 v2, v[16:19]")
k(f"s_lshl_b32 s{sP0}, s{sQT}, 12")
k(f"s_add_u32 s{sP0}, s{sP0}, {A1BOX}")
k(f"s_lshl_b32 s{sP1}, s{sQR}, 10")
k(f"s_add_u32 s{sP1}, s{sP1}, s{sP0}")
k(f"v_and_b32 v14, 31, v{vL}")
k(f"v_lshlrev_b32 v137, 4, v14")
k(f"v_lshrrev_b32 v2, 5, v{vL}")
k(f"v_lshlrev_b32 v140, 11, v2")
k(f"v_add_u32 v141, v140, v137")
k.barrier()
stamp("wo")
k(f"s_cmp_lg_u32 s{sV}, 0")
k("s_cbranch_scc1 L_a1poll")
for w in range(4):
    k(f"ds_read_b128 v[{16+4*w}:{19+4*w}], v{vOK} offset:{w*1024}")
for w in range(4):
    k(f"ds_read_b64 v[{32+2*w}:{33+2*w}], v{vOK} offset:{4096+w*1024}")
for j in range(3):
    k(f"v_add_f32 v{16+j}, v{16+j}, v{20+j}")
    k(f"v_add_f32 v{24+j}, v{24+j}, v{28+j}")
for j in range(3):
    k(f"v_add_f32 v{16+j}, v{16+j}, v{24+j}")
for j in range(3):
    k(f"v_mov_b32 v{20+j}, v{16+j}")
k(f"v_pk_add_f32 v[32:33], v[32:33], v[34:35]")
k(f"v_pk_add_f32 v[36:37], v[36:37], v[38:39]")
for j in range(3):
    k(f"v_permlane32_swap_b32 v{16+j}, v{20+j}")
k(f"v_pk_add_f32 v[32:33], v[32:33], v[36:37]")
k(f"v_mov_b32 v19, s{sTAG}")
for j in range(3):
    k(f"v_add_f32 v{16+j}, v{16+j}, v{20+j}")
k(f"buffer_store_dwordx4 v[16:19], v137, {srd(sWS)}, s{sP1} offen sc1")
k(f"v_mov_b64 v[36:37], v[32:33]")
k(f"v_mov_b32 v35, s{sTAG}")
k(f"v_mov_b32 v2, 0")
for j in range(2):
    k(f"v_permlane32_swap_b32 v{32+j}, v{36+j}")
k(f"v_pk_add_f32 v[32:33], v[32:33], v[36:37]")
k(f"buffer_store_dwordx4 v[32:35], v2, {srd(sWS)}, s{sP1} offen offset:512 sc1")
k.settle()
k.label("L_a1poll")
k(f"buffer_load_dwordx4 v[16:19], v141, {srd(sWS)}, s{sP0} offen sc1")
k(f"buffer_load_dwordx4 v[20:23], v141, {srd(sWS)}, s{sP0} offen offset:1024 sc1")
k(f"buffer_load_dwordx4 v[24:27], v140, {srd(sWS)}, s{sP0} offen offset:512 sc1")
k(f"buffer_load_dwordx4 v[28:31], v140, {srd(sWS)}, s{sP0} offen offset:1536 sc1")
k.wait_vm()
k(f"v_xor_b32 v14, s{sTAG}, v19")
for n in (23, 27, 31):
    k(f"v_bitop3_b32 v14, v14, v{n}, s{sTAG} bitop3:0xf6")
k("v_cmp_ne_u32 vcc, 0, v14")
k("s_cmp_eq_u64 vcc, 0")
spin_guard("L_a1poll")
stamp("a1_in")
for j in range(3):
    k(f"v_add_f32 v{16+j}, v{16+j}, v{20+j}")
k(f"v_add_f32 v19, v24, v28")
k(f"v_add_f32 v20, v25, v29")
for j in range(5):
    k(f"v_mov_b32 v{24+j}, v{16+j}")
for j in range(5):
    k(f"v_permlane32_swap_b32 v{16+j}, v{24+j}")
for j in range(5):
    k(f"v_add_f32 v{16+j}, v{16+j}, v{24+j}")
k(f"v_mul_f32 v16, 0x3b000000, v16")
k(f"v_mul_f32 v17, 0x3b000000, v17")
k(f"v_fma_f32 v17, -v16, v16, v17")
k(f"v_max_f32 v17, 0, v17")
bf16r(17)
k(f"v_add_f32 v17, 0x3727c5ac, v17")
bf16r(17)
k(f"v_sqrt_f32 v17, v17")
bf16r(16)
bf16r(17)
k(f"v_rcp_f32 v22, v17")
k(f"v_fma_f32 v18, -v16, v19, v18")
k(f"v_mul_f32 v23, v16, v22")
k(f"v_fma_f32 v18, v18, v22, v20")
k(f"v_sub_f32 v23, 0, v23")
k(f"v_cvt_pk_bf16_f32 v18, v18, v18")
k(f"s_lshl_b32 s{sT3}, s{sQT}, 5")
k(f"v_and_b32 v14, 31, v{vL}")
k(f"v_add_u32 v142, s{sT3}, v14")
k(f"v_ashrrev_i32 v24, 31, v18")
k(f"v_sub_u32 v14, 2047, v142")
k(f"v_or_b32 v24, 0x80000000, v24")
k(f"v_lshlrev_b32 v14, 1, v14")
k(f"v_xor_b32 v24, v24, v18")
k(f"v_and_b32 v24, 0xffff0000, v24")
k(f"v_or_b32 v24, v24, v14")
k(f"v_mov_b32 v143, v24")
k(f"v_mov_b32 v25, 0")


def top2(hi, lo, steps):
    fill_ = []
    for mode in steps:
        k(f"v_min_u32_dpp v26, v{hi}, v{hi} {mode}")
        k(f"v_max_u32_dpp v27, v{lo}, v{lo} {mode}")
        k(f"v_max_u32_dpp v{hi}, v{hi}, v{hi} {mode}")
        k(f"v_max_u32 v{lo}, v26, v27")


FM = " row_mask:0xf bank_mask:0xf"
ST16 = ["quad_perm:[1,0,3,2]" + FM, "quad_perm:[2,3,0,1]" + FM, "row_half_mirror" + FM, "row_mirror" + FM]
top2(24, 25, ST16 + ["row_bcast:15 row_mask:0xa bank_mask:0xf"])
sK1, sK2 = 66, 67
k(f"v_readlane_b32 s{sK1}, v24, 31")
k(f"v_readlane_b32 s{sK2}, v25, 31")
k(f"s_or_b32 s{sT3}, s{sQR}, s{sV}")
k(f"s_cmp_lg_u32 s{sT3}, 0")
k(f"s_cselect_b32 s{sT3}, 0x40000000, 0")
k(f"s_lshl_b32 s{sT4}, s{sQT}, 4")
k(f"s_add_u32 s{sT4}, s{sT4}, {A2BOX}")
k(f"v_mov_b32 v2, s{sT3}")
k(f"v_mov_b32 v28, s{sK1}")
k(f"v_or_b32 v29, 1, s{sK2}")
k(f"v_mov_b32 v30, s{sTAG}")
k(f"v_mov_b32 v31, s{sTAG}")
k(f"buffer_store_dwordx4 v[28:31], v2, {srd(sWS)}, s{sT4} offen sc1")
vH2, vHP, vBS = 32, 48, 96
for j in range(8):
    k(f"v_pk_fma_f32 v[{vH2+2*j}:{vH2+2*j+1}], v[{vX1+2*j}:{vX1+2*j+1}], v[22:23], v[22:23] op_sel:[0,0,1] op_sel_hi:[1,0,1]")
for j in range(8):
    k(f"v_pk_fma_f32 v[{vH2+2*j}:{vH2+2*j+1}], v[{vH2+2*j}:{vH2+2*j+1}], v[{vA2+2*j}:{vA2+2*j+1}], v[{vSB+2*j}:{vSB+2*j+1}]")
for j in range(8):
    k(f"v_cvt_pk_bf16_f32 v{vHP+j}, v{vH2+2*j}, v{vH2+2*j+1}")
k(f"v_cmp_eq_u32 vcc, s{sK2}, v143")
k(f"v_mov_b32 v14, 0x40000000")
k(f"v_mov_b32 v26, 8192")
k(f"v_cndmask_b32 v14, v14, v26, vcc")
k(f"v_cmp_eq_u32 vcc, s{sK1}, v143")
k(f"v_lshrrev_b32 v2, 5, v{vL}")
k(f"v_lshlrev_b32 v2, 5, v2")
k(f"v_cndmask_b32 v14, v14, 0, vcc")
k(f"v_add_u32 v14, v14, v2")
for p in range(2):
    k(f"v_add3_u32 v{56+p}, v{vHP+4*p}, v{vHP+4*p+1}, s{sTAG}")
for p in range(2):
    k(f"v_add3_u32 v{56+p}, v{vHP+4*p+2}, v{vHP+4*p+3}, v{56+p}")
k(f"s_lshl_b32 s{sT3}, s{sQR}, 2")
k(f"s_add_u32 s{sT3}, s{sT3}, s{sV}")
k(f"s_lshl_b32 s{sT4}, s{sQT}, 14")
k(f"s_add_u32 s{sT4}, s{sT4}, {CANDBOX}")
k(f"s_lshl_b32 s{sP0}, s{sT3}, 7")
k(f"s_add_u32 s{sP0}, s{sP0}, s{sT4}")
k(f"s_lshl_b32 s{sP1}, s{sT3}, 8")
k(f"s_add_u32 s{sP1}, s{sP1}, s{sT4}")
k(f"s_add_u32 s{sP1}, s{sP1}, 4096")
for p in range(2):
    k(f"buffer_store_dwordx4 v[{vHP+4*p}:{vHP+4*p+3}], v14, {srd(sWS)}, s{sP0} offen offset:{p*64} sc1")
    k(f"buffer_store_dword v{56+p}, v14, {srd(sWS)}, s{sP0} offen offset:{p*64+16} sc1")
for r in range(16):
    k(f"v_fma_f32 v{vBS+2*r}, v{vGB+r}, v{vH2+r}, v{vX1+r}")
    k(f"v_mov_b32 v{vBS+2*r+1}, s{sTAG}")
for j in range(8):
    k(f"buffer_store_dwordx4 v[{vBS+4*j}:{vBS+4*j+3}], v14, {srd(sWS)}, s{sP1} offen offset:{(j>>1)*64+(j&1)*16} sc1")
vOP = 64
for j in range(8):
    k(f"v_cvt_pk_bf16_f32 v{vOP+j}, v{vBS+4*j}, v{vBS+4*j+2}")
for p in range(2):
    for j in range(2):
        k(f"v_permlane32_swap_b32 v{vOP+4*p+j}, v{vOP+4*p+2+j}")
stamp("a2_pub")

k(f"s_mov_b32 s{sT4}, {A2BOX}")
k.label("L_a2poll")
k(f"buffer_load_dwordx4 v[24:27], v{vOK}, {srd(sWS)}, s{sT4} offen sc1")
k.wait_vm()
k(f"v_cmp_ne_u32 vcc, s{sTAG}, v26")
k("s_cmp_eq_u64 vcc, 0")
spin_guard("L_a2poll")
top2(24, 25, ST16 + ["row_bcast:15 row_mask:0xa bank_mask:0xf", "row_bcast:31 row_mask:0xc bank_mask:0xf"])
k(f"v_readlane_b32 s{sK1}, v24, 63")
k(f"v_readlane_b32 s{sK2}, v25, 63")
stamp("top2")
sC1, sC2, sTK1, sTK2 = 68, 69, 70, 71
for sk, sc, st_ in ((sK1, sC1, sTK1), (sK2, sC2, sTK2)):
    k(f"s_bfe_u32 s{st_}, s{sk}, 0xb0001")
    k(f"s_sub_u32 s{st_}, 2047, s{st_}")
    k(f"s_lshr_b32 s{sc}, s{st_}, 5")
    k(f"s_lshl_b32 s{sc}, s{sc}, 1")
    k(f"s_and_b32 s{sT3}, s{sk}, 1")
    k(f"s_add_u32 s{sc}, s{sc}, s{sT3}")
    k(f"s_lshl_b32 s{sc}, s{sc}, 13")


def out_stores():
    k(f"v_cmp_eq_u32 vcc, s{sTK1}, v142")
    k(f"v_cmp_eq_u32 s[{sT3}:{sT3+1}], s{sTK2}, v142")
    k(f"v_lshrrev_b32 v2, 5, v{vL}")
    k(f"v_lshlrev_b32 v2, 4, v2")
    k(f"v_lshl_add_u32 v2, v142, 10, v2")
    k(f"s_or_b64 vcc, vcc, s[{sT3}:{sT3+1}]")
    k(f"v_mov_b32 v3, 0x40000000")
    k(f"s_lshl_b32 s{sT3}, s{sQR}, 8")
    k(f"s_lshl_b32 s{sT4}, s{sV}, 6")
    k(f"s_add_u32 s{sT3}, s{sT3}, s{sT4}")
    k(f"v_cndmask_b32 v2, v2, v3, vcc")
    for p in range(2):
        k(f"buffer_store_dwordx4 v[{vOP+4*p}:{vOP+4*p+3}], v2, {srd(sOUT)}, s{sT3} offen offset:{32*p}")


k(f"s_bfe_u32 s{sT3}, s2, 0x40003")
k(f"s_cmp_lt_u32 s{sT3}, 7")
k("s_cbranch_scc0 L_not5")
k(f"v_and_b32 v2, 1, v{vL}")
k(f"v_cmp_eq_u32 vcc, 1, v2")
k(f"v_mov_b32 v2, s{sC1}")
k(f"v_mov_b32 v14, s{sC2}")
k(f"v_lshrrev_b32 v3, 4, v{vL}")
k(f"v_cndmask_b32 v14, v2, v14, vcc")
k(f"v_lshl_add_u32 v14, v3, 5, v14")
k(f"s_lshl_b32 s{sP0}, s{sV}, 9")
k(f"s_add_u32 s{sP0}, s{sP0}, {CANDBOX}")


def xs_loads():
    for ks in range(4):
        k(f"buffer_load_dwordx4 v[{16+4*ks}:{19+4*ks}], v14, {srd(sWS)}, s{sP0} offen offset:{ks*128} sc1")
        k(f"buffer_load_dword v{32+ks}, v14, {srd(sWS)}, s{sP0} offen offset:{ks*128+16} sc1")


xs_loads()
tokX = k.vm[-1]["id"]
out_stores()
k.wait_vm(tokX)
k("s_branch L_xschk")
k.label("L_xspoll")
sv = list(k.vm)
xs_loads()
k.force_wait(vm=0)
k.vm = sv
k.label("L_xschk")
for ks in range(4):
    k(f"v_add3_u32 v{36+ks}, v{16+4*ks}, v{17+4*ks}, s{sTAG}")
for ks in range(4):
    k(f"v_add3_u32 v{36+ks}, v{18+4*ks}, v{19+4*ks}, v{36+ks}")
for ks in range(4):
    for m in range(2):
        a = aGU + (m * 4 + ks) * 4
        k(mf16(40 + 4 * m, f"v[{16+4*ks}:{19+4*ks}]", f"a[{a}:{a+3}]", ks == 0))
k(f"v_xor_b32 v2, v36, v32")
for ks in range(1, 4):
    k(f"v_bitop3_b32 v2, v2, v{36+ks}, v{32+ks} bitop3:0xf6")
k("v_cmp_ne_u32 vcc, 0, v2")
k("s_cmp_eq_u64 vcc, 0")
k.settle()
spin_guard("L_xspoll")
stamp("xs_in")
k(f"v_and_b32 v2, 15, v{vL}")
k(f"v_lshlrev_b32 v2, 4, v2")
k(f"s_lshl_b32 s{sT3}, s{sV}, 8")
k(f"s_add_u32 s{sT3}, s{sT3}, 16384")
k(f"v_add_u32 v3, s{sT3}, v2")
k(f"v_mov_b32 v42, v41")
k(f"v_mov_b32 v41, v44")
k(f"v_mov_b32 v43, v45")
k(f"ds_write_b128 v3, v[40:43]")
k(f"v_bfe_u32 v3, v{vL}, 4, 1")
k(f"v_lshl_add_u32 v2, v3, 3, v2")
k.barrier()
for w in range(4):
    k(f"ds_read_b64 v[{40+2*w}:{41+2*w}], v2 offset:{16384+w*256}")
k(f"s_lshl_b32 s{sP0}, s{sROLE}, 13")
k(f"s_add_u32 s{sP0}, s{sP0}, {YBOX}")
k(f"v_lshlrev_b32 v3, 5, v0")
k(f"v_mov_b32 v50, s{sTAG}")
k(f"v_mov_b32 v54, s{sTAG}")
k(f"v_pk_add_f32 v[40:41], v[40:41], v[42:43]")
k(f"v_pk_add_f32 v[44:45], v[44:45], v[46:47]")
k(f"v_pk_add_f32 v[40:41], v[40:41], v[44:45]")
k(f"v_cvt_pk_bf16_f32 v41, v40, v41")
k(f"v_lshlrev_b32 v40, 16, v41")
k(f"v_and_b32 v41, 0xffff0000, v41")
k(f"v_mul_f32 v42, 0xbfb8aa3b, v40")
k(f"v_exp_f32 v42, v42")
k(f"v_add_f32 v42, 1.0, v42")
k(f"v_rcp_f32 v42, v42")
k(f"v_mul_f32 v40, v40, v42")
bf16r(40)
k(f"v_mul_f32 v40, v40, v41")
k(f"v_mov_b32_dpp v41, v40 quad_perm:[1,0,3,2]{FM}")
k(f"v_cvt_pk_bf16_f32 v40, v40, v41")
sA = 72
for t in range(2):
    for i in range(8):
        k(f"v_readlane_b32 s{sA+8*t+i}, v40, {16*t+2*i}")
for i in range(8):
    for c_ in range(2):
        for t in range(2):
            d = 48 + 4 * c_ + t
            k(f"v_dot2_f32_bf16 v{d}, v{vDW+8*c_+i}, s{sA+8*t+i}, " + ("0" if i == 0 else f"v{d}"))
for c_ in range(2):
    k(f"buffer_store_dwordx4 v[{48+4*c_}:{51+4*c_}], v3, {srd(sWS)}, s{sP0} offen offset:{16*c_} sc1")
stamp("y_pub")
finish()

k.label("L_not5")
k.vm = []
k.lg = []
out_stores()
k(f"s_bfe_u32 s{sT3}, s2, 0x20005")
k(f"s_cmp_eq_u32 s{sT3}, 2")
k("s_cbranch_scc0 L_fin")
k(f"s_bfe_u32 s{sT3}, s2, 0x20001")
k(f"s_cmp_eq_u32 s{sT3}, s{sV}")
k("s_cbranch_scc0 L_fin")
k(f"s_bfe_u32 s{sT4}, s2, 0x20003")
k(f"s_lshl_b32 s{sT3}, s{sT3}, 2")
k(f"s_add_u32 s{sT3}, s{sT3}, s{sT4}")
k(f"s_lshl_b32 s{sP0}, s{sQR}, 4")
k(f"s_add_u32 s{sT3}, s{sT3}, s{sP0}")
k(f"s_lshl_b32 s{sP0}, s{sT3}, 7")
k(f"s_add_u32 s{sP0}, s{sP0}, {YBOX}")
k(f"s_lshl_b32 s{sP1}, s{sT3}, 6")
k(f"s_add_u32 s{sP1}, s{sP1}, {CANDBOX+4096}")
k(f"v_lshlrev_b32 v2, 13, v{vR8}")
k(f"v_lshl_add_u32 v2, v{vC8}, 4, v2")
k(f"v_cmp_gt_u32 vcc, 32, v{vL}")
k(f"v_mov_b32 v3, s{sC2}")
k(f"v_mov_b32 v14, s{sC1}")
k(f"v_cndmask_b32 v3, v3, v14, vcc")
k(f"v_lshl_add_u32 v3, v{vC8}, 3, v3")
k(f"v_mov_b32 v76, s{sK2}")
k(f"v_mov_b32 v14, s{sK1}")
k(f"v_cndmask_b32 v76, v76, v14, vcc")
k(f"v_mov_b32 v77, s{sTK2}")
k(f"v_mov_b32 v14, s{sTK1}")
k(f"v_cndmask_b32 v77, v77, v14, vcc")
k(f"v_and_b32 v76, 0xffff0000, v76")
k(f"v_ashrrev_i32 v14, 31, v76")
k(f"v_not_b32 v14, v14")
k(f"v_or_b32 v14, 0x80000000, v14")
k(f"v_xor_b32 v76, v76, v14")
k(f"v_and_b32 v76, 0xffff0000, v76")
k(f"v_mul_f32 v76, 0xbfb8aa3b, v76")
k(f"v_exp_f32 v76, v76")
k(f"v_add_f32 v76, 1.0, v76")
k(f"v_rcp_f32 v76, v76")
bf16r(76)
k(f"s_lshl_b32 s{sT0}, s{sV}, 13")
k(f"s_add_u32 s{sT0}, s{sT0}, {GU}")
k(f"v_lshrrev_b32 v14, 5, v{vL}")
k(f"v_lshlrev_b32 v14, 4, v14")
k(f"v_add_u32 v14, s{sT0}, v14")
for q in range(4):
    k(f"ds_write_b128 v14, v[{vGB+4*q}:{vGB+4*q+3}] offset:{32*q}")
k(f"s_lshl_b32 s{sT4}, s{sT4}, 5")
k(f"s_add_u32 s{sT0}, s{sT0}, s{sT4}")
k(f"v_lshlrev_b32 v14, 2, v{vC8}")
k(f"v_add_u32 v14, s{sT0}, v14")
k(f"ds_read_b32 v78, v14")
k(f"v_mul_f32 v76, v76, v78")
k(f"v_lshlrev_b32 v77, 10, v77")
k(f"v_lshl_add_u32 v77, v{vC8}, 1, v77")
k(f"s_lshl_b32 s{sT3}, s{sT3}, 4")
k.label("L_ypoll")
k(f"s_mov_b32 s{sT4}, s{sP0}")
k(f"buffer_load_dwordx2 v[72:73], v3, {srd(sWS)}, s{sP1} offen sc1")
for i in range(14):
    k(f"buffer_load_dwordx4 v[{16+4*i}:{19+4*i}], v2, {srd(sWS)}, s{sT4} offen sc1")
    if i < 13:
        k(f"s_add_u32 s{sT4}, s{sT4}, 65536")
k(f"v_xor_b32 v14, s{sTAG}, v73")
for i in range(14):
    k(f"v_bitop3_b32 v14, v14, v{18+4*i}, s{sTAG} bitop3:0xf6")
    if i:
        k(f"v_pk_add_f32 v[16:17], v[16:17], v[{16+4*i}:{17+4*i}]")
k("v_cmp_ne_u32 vcc, 0, v14")
k("s_cmp_eq_u64 vcc, 0")
spin_guard("L_ypoll")
stamp("y_in")
k(f"v_permlane32_swap_b32 v16, v17")
k(f"v_add_f32 v16, v16, v17")
k(f"v_mov_b32 v17, v16")
k(f"v_permlane16_swap_b32 v16, v17")
k(f"v_add_f32 v16, v16, v17")
k(f"v_add_f32_dpp v16, v16, v16 row_ror:8{FM}")
bf16r(16)
k(f"v_fma_f32 v16, v16, v76, v72")
k(f"v_cvt_pk_bf16_f32 v16, v16, v16")
k(f"buffer_store_short v16, v77, {srd(sOUT)}, s{sT3} offen")
k(f"s_cmp_lg_u32 s{sT3}, 0")
k("s_cbranch_scc1 L_fin")
k(f"v_mov_b32 v2, 0")
k(f"v_mov_b32 v3, s{sTAG}")
k(f"buffer_store_dword v3, v2, {srd(sWS)}, 0 offen offset:{CTL} sc1")
k.label("L_fin")
finish()
k.label("L_exit")
k("s_endpgm")
k.raw("L_code_end:")

HEADER = open("cdna_kernels/" + NAME + ".s.ref").read().split("; Override launch")[0]
src = HEADER + f"; @launch grid=(256,1,1) block=(256,1,1) lds={LDS_BYTES}\n"
src += f""".amdgcn_target "amdgcn-amd-amdhsa--gfx950"
.text
.globl {NAME}_kernel
.p2align 8
.type {NAME}_kernel,@function
{NAME}_kernel:
{k.text()}.section .rodata,"a"
.p2align 6
.amdhsa_kernel {NAME}_kernel
  .amdhsa_next_free_vgpr 512
  .amdhsa_next_free_sgpr 102
  .amdhsa_accum_offset 256
  .amdhsa_group_segment_fixed_size 0
  .amdhsa_kernarg_size 104
  .amdhsa_user_sgpr_count 2
  .amdhsa_user_sgpr_kernarg_segment_ptr 1
  .amdhsa_system_sgpr_workgroup_id_x 1
.end_amdhsa_kernel
"""
outp = "k.s"
for a_ in sys.argv:
    if a_.startswith("--out="):
        outp = a_[6:]
open(outp, "w").write(src)
import json
json.dump(dict(stamps=stamp_names, DBG=DBG, KVBOX=KVBOX, KVCHK=KVCHK, OBOX=OBOX, OCHK=OCHK, MODBOX=MODBOX, A1BOX=A1BOX,
               A2BOX=A2BOX, CANDBOX=CANDBOX, YBOX=YBOX, WS_BYTES=WS_BYTES), open(outp + ".json", "w"))
print("wrote", outp, "nops", k.nops, "lines", len(k.out))
```

```python
import re

REG = re.compile(r"^(-?\|?)?([vas])(?:(\d+)|\[(\d+):(\d+)\])\|?$")
TRANS = ("v_exp_f32", "v_log_f32", "v_rcp_f32", "v_rsq_f32", "v_sqrt_f32", "v_sin_f32", "v_cos_f32")


def regs_of(tok):
    tok = tok.strip()
    if tok.startswith("abs(") or tok.startswith("neg("):
        tok = tok[4:-1]
    if tok == "vcc":
        return {("s", 106), ("s", 107)}
    if tok == "vcc_lo":
        return {("s", 106)}
    if tok == "vcc_hi":
        return {("s", 107)}
    if tok == "exec":
        return {("s", 126), ("s", 127)}
    if tok == "exec_lo":
        return {("s", 126)}
    if tok == "exec_hi":
        return {("s", 127)}
    if tok == "m0":
        return {("s", 124)}
    m = REG.match(tok)
    if not m:
        return set()
    f = m.group(2)
    if m.group(3) is not None:
        return {(f, int(m.group(3)))}
    return {(f, i) for i in range(int(m.group(4)), int(m.group(5)) + 1)}


class Ins:
    __slots__ = ("text", "op", "cls", "rd", "wr", "srcA", "srcB", "srcC", "passes", "dpp", "ws", "wide_store", "lds_dma", "lanesel")

    def __init__(self, text):
        self.text = text
        t = text.split(";")[0].strip()
        parts = t.split(None, 1)
        op = parts[0]
        self.op = op
        rest = parts[1] if len(parts) > 1 else ""
        ops, depth, cur = [], 0, ""
        for ch in rest:
            if ch in "[(":
                depth += 1
            if ch in "])":
                depth -= 1
            if ch == "," and depth == 0:
                ops.append(cur.strip())
                cur = ""
            else:
                cur += ch
        mods = ""
        if cur.strip():
            sp = cur.strip().split(None, 1)
            ops.append(sp[0])
            mods = sp[1] if len(sp) > 1 else ""
        R = [regs_of(o) for o in ops]
        U = lambda l: set().union(*l) if l else set()
        self.rd, self.wr = set(), set()
        self.srcA = self.srcB = self.srcC = set()
        self.passes = 0
        self.dpp = False
        self.ws = 1
        self.wide_store = set()
        self.lds_dma = False
        self.lanesel = set()
        if op.startswith("v_mfma"):
            self.cls = "mfma"
            self.wr = R[0]
            self.srcA, self.srcB, self.srcC = R[1], R[2], R[3]
            self.rd = U(R[1:])
            self.passes = 8 if "32x32" in op else 4
        elif op.startswith("v_"):
            self.cls = "valu"
            self.dpp = ("_dpp" in op) or any(k in mods for k in ("row_", "quad_perm", "wave_"))
            if op.startswith("v_cmp"):
                self.wr = R[0]
                self.rd = U(R[1:])
            elif op.startswith("v_permlane") or op.startswith("v_swap"):
                self.wr = R[0] | R[1]
                self.rd = R[0] | R[1]
            elif op.startswith(("v_add_co", "v_sub_co", "v_addc_co", "v_subb_co", "v_div_scale", "v_mad_u64")):
                self.wr = R[0] | R[1]
                self.rd = U(R[2:])
            elif op == "v_nop":
                pass
            else:
                self.wr = R[0]
                self.rd = U(R[1:])
                if op.startswith(("v_fmac", "v_dot2c", "v_writelane", "v_pk_fmac")) or self.dpp:
                    self.rd |= R[0]
                if op.startswith(("v_readlane", "v_writelane")):
                    self.lanesel = R[2]
        elif op.startswith("ds_"):
            self.cls = "lds"
            if op.startswith(("ds_read", "ds_bpermute", "ds_permute", "ds_swizzle")) or "_rtn" in op:
                self.wr = R[0]
                self.rd = U(R[1:])
            else:
                self.rd = U(R)
            if "addtid" in op:
                self.lds_dma = True
        elif op.startswith(("buffer_", "global_")):
            self.cls = "vmem"
            allm = " " + mods + " "
            if op.startswith(("buffer_wbl2", "buffer_inv")):
                pass
            elif " lds " in allm or "load_lds" in op:
                self.lds_dma = True
                self.rd = U(R) | {("s", 124)}
            elif "_load_" in op:
                self.wr = R[0]
                self.rd = U(R[1:])
            else:
                self.rd = U(R)
                if op.endswith(("x3", "x4")):
                    self.wide_store = R[0] if op.startswith("buffer_") else R[1]
        elif op.startswith(("s_load", "s_buffer_load", "s_memtime", "s_memrealtime")):
            self.cls = "smem"
            self.wr = R[0]
            self.rd = U(R[1:])
        elif op == "s_nop":
            self.cls = "nop"
            self.ws = int(ops[0], 0) + 1
        elif op in ("s_waitcnt", "s_barrier", "s_endpgm", "s_sleep", "s_setprio") or op.startswith(("s_branch", "s_cbranch")):
            self.cls = "ctl"
        elif op.startswith("s_"):
            self.cls = "salu"
            if op.startswith(("s_cmp", "s_bitcmp")):
                self.rd = U(R)
            elif op.startswith("s_setpc"):
                self.rd = U(R)
            else:
                self.wr = R[0]
                self.rd = U(R[1:])
                if "saveexec" in op:
                    self.wr |= {("s", 126), ("s", 127)}
                if op.startswith(("s_addk", "s_mulk")):
                    self.rd |= R[0]
        else:
            raise ValueError("unknown instruction: " + text)


def V(r):
    return {x for x in r if x[0] in "va"}


def S(r):
    return {x for x in r if x[0] == "s"}


class KB:
    def __init__(self):
        self.out = []
        self.hist = []
        self.pos = 0
        self.vm = []
        self.lg = []
        self.nid = 0
        self.nlab = 0
        self.nops = 0

    def raw(self, s):
        self.out.append(s)

    def comment(self, s):
        self.out.append("    ; " + s)

    def newlabel(self, base="L"):
        self.nlab += 1
        return f"{base}_{self.nlab}"

    def label(self, name, pad=True):
        self.out.append(name + ":")

    def _emit(self, ins):
        self.out.append("    " + ins.text)
        self.hist.append((ins, self.pos))
        self.pos += ins.ws
        if len(self.hist) > 40:
            self.hist.pop(0)

    def _wait(self, vm=None, lg=None):
        t = "s_waitcnt"
        if vm is not None:
            assert vm <= 63
            t += f" vmcnt({vm})"
            self.vm = self.vm[max(0, len(self.vm) - vm):] if vm else []
        if lg is not None:
            lg = min(lg, 15)
            t += f" lgkmcnt({lg})"
            self.lg = self.lg[max(0, len(self.lg) - lg):] if lg else []
        self._emit(Ins(t))

    def wait_vm(self, tok=None):
        if tok is None:
            if self.vm:
                self._wait(vm=0)
            return
        for i, e in enumerate(self.vm):
            if e["id"] == tok:
                self._wait(vm=len(self.vm) - 1 - i)
                return

    def wait_lg(self, tok=None):
        if tok is None:
            if self.lg:
                self._wait(lg=0)
            return
        for i, e in enumerate(self.lg):
            if e["id"] == tok:
                n = len(self.lg) - 1 - i
                if any(x["smem"] for x in self.lg):
                    n = 0
                self._wait(lg=n)
                return

    def force_wait(self, vm=None, lg=None):
        self._wait(vm=vm, lg=lg)

    def barrier(self):
        self.wait_lg()
        self("s_barrier")

    def _need(self, ins):
        need = 0
        rdv, wrv = V(ins.rd), V(ins.wr)
        rds = S(ins.rd)
        for p, ppos in self.hist:
            dist = self.pos - ppos - p.ws
            req = 0
            pw = p.wr
            if p.cls == "valu":
                pwv, pws = V(pw), S(pw)
                if ins.cls == "mfma" and pwv & rdv:
                    req = max(req, 2)
                if ins.cls == "valu":
                    if pws & rds:
                        req = max(req, 2)
                    if pws & ins.lanesel:
                        req = max(req, 4)
                    if ins.dpp and pwv & rdv:
                        req = max(req, 2)
                    if ins.op.startswith(("v_readlane", "v_readfirstlane")) and pwv & rdv:
                        req = max(req, 1)
                    if ins.op.startswith("v_permlane") and pwv & rdv:
                        req = max(req, 2)
                    if p.op.startswith(TRANS) and pwv & rdv:
                        req = max(req, 1)
                if ins.cls == "vmem" and pws & rds:
                    req = max(req, 5)
                if ins.cls in ("salu", "smem") and pws & rds:
                    req = max(req, 1)
                if p.op.startswith("v_dot"):
                    if pwv & (rdv | wrv):
                        same = ins.op == p.op
                        if not (same and ins.wr == p.wr):
                            req = max(req, 3)
                if p.op.startswith(TRANS) and ins.cls in ("vmem", "lds", "mfma") and pwv & rdv:
                    req = max(req, 2 if ins.cls == "mfma" else 1)
            elif p.cls == "mfma":
                big = p.passes == 8
                if ins.cls == "mfma":
                    if pw & (ins.srcA | ins.srcB):
                        req = max(req, 12 if big else 8)
                    if pw & ins.srcC:
                        if not (pw == ins.srcC and p.passes == ins.passes):
                            req = max(req, 10 if big else 6)
                    elif pw & ins.wr:
                        if p.passes != ins.passes:
                            req = max(req, 10 if big else 6)
                elif ins.cls in ("valu", "vmem", "lds"):
                    if pw & (rdv | wrv):
                        req = max(req, 12 if big else 8)
                    if p.srcC & wrv:
                        req = max(req, 7 if big else 3)
            elif p.cls == "salu":
                if ("s", 124) in pw and ins.lds_dma:
                    req = max(req, 1)
            elif p.cls == "vmem":
                if p.wide_store & wrv:
                    req = max(req, 2)
            if req > dist:
                need = max(need, req - dist)
        return need

    def __call__(self, s):
        tok = None
        for line in s.strip("\n").split("\n"):
            line = line.strip()
            if not line:
                continue
            if line.startswith(";"):
                self.out.append("    " + line)
                continue
            if line.endswith(":") or line.startswith("."):
                self.out.append(line)
                continue
            tok = self.ins(line)
        return tok

    def ins(self, line):
        ins = Ins(line)
        if ins.op == "s_waitcnt":
            m = re.search(r"vmcnt\((\d+)\)", line)
            n = re.search(r"lgkmcnt\((\d+)\)", line)
            self._wait(vm=int(m.group(1)) if m else None, lg=int(n.group(1)) if n else None)
            return None
        touch = ins.rd | ins.wr
        vm = lg = None
        for i, e in enumerate(self.vm):
            if e["wr"] & touch:
                vm = len(self.vm) - 1 - i
        for i, e in enumerate(self.lg):
            if e["wr"] & touch:
                lg = len(self.lg) - 1 - i
        if lg is not None and any(x["smem"] for x in self.lg):
            lg = 0
        if vm is not None or lg is not None:
            self._wait(vm=vm, lg=lg)
        n = self._need(ins)
        while n > 0:
            k = min(n, 16)
            self._emit(Ins(f"s_nop {k-1}"))
            self.nops += k
            n -= k
        self._emit(ins)
        if ins.cls == "vmem":
            self.nid += 1
            self.vm.append({"id": self.nid, "wr": ins.wr})
            assert len(self.vm) <= 63, "vmcnt overflow"
            return self.nid
        if ins.cls in ("lds", "smem"):
            self.nid += 1
            self.lg.append({"id": self.nid, "wr": ins.wr, "smem": ins.cls == "smem"})
            return self.nid
        return None

    def settle(self):
        last = 0
        for p, ppos in self.hist:
            dist = self.pos - ppos - p.ws
            req = {"mfma": 12, "valu": 5, "salu": 1, "vmem": 2}.get(p.cls, 0)
            last = max(last, req - dist)
        while last > 0:
            k = min(last, 16)
            self._emit(Ins(f"s_nop {k-1}"))
            last -= k

    def text(self):
        return "\n".join(self.out) + "\n"


def interleave(main, fill, per=2, start=0):
    out, j = [], 0
    for i, m in enumerate(main):
        out.append(m)
        if i >= start:
            for _ in range(per):
                if j < len(fill):
                    out.append(fill[j])
                    j += 1
    out += fill[j:]
    return out
```

```python
import sys, json
from kb import KB, interleave

NAME = "adaLN_cond__sliding_block__moe_arch_mod__prompt"
STAMP = "--stamp" in sys.argv or "--time" in sys.argv
LIGHT = "--time" in sys.argv
OPT = {}
for a_ in sys.argv[1:]:
    if a_.startswith("-D"):
        kk_, vv_ = a_[2:].split("=")
        OPT[kk_] = int(vv_)


def opt(name, default):
    return OPT.get(name, default)


CTL = 0
MODBOX = 4096
CBOX = MODBOX + 24 * 2048
A2BOX = CBOX + 32768
A1BOX = A2BOX + 65536
YBOX = A1BOX + 64 * 4096
XBOX = YBOX + 112 * 4096
CANDBOX = 0x100000
OCHK = 0x200000
OFLG = 0x300000
KFLG = 0x380000
OBOX = 0x400000
KVBOX = 0x600000
KVS = 4608
LOC = LOCX = 0x1000000
DBG = OBOX + LOC + 0x200000
WS_BYTES = DBG + (0x100000 if STAMP else 0)
assert XBOX + 32768 <= CANDBOX
BIG = 0x40000000

sX, sWQ, sWO, sWR, sGA, sUP, sDN, sCC, sWM, sOUT, sWS, sPC = 4, 8, 12, 16, 20, 24, 28, 32, 36, 40, 44, 48
sV, sTB, sHG, sROT, sTAG = 52, 53, 54, 55, 56
sT0, sT1, sT2, sT3, sT4, sT5 = 57, 58, 59, 60, 61, 62
sSPIN = 63
sTG0, sTG1, sTG2, sTG3 = 0, 98, 99, 3
sHF, sRAW = 96, 97
SPIN_MAX = 1 << 16
TAGB = [sTG0, sTG1, sTG2, sTG3]
FM = " row_mask:0xf bank_mask:0xf"
ONES = 0x3f803f80


def srd(b):
    return f"s[{b}:{b+3}]"


HB = 32768
SG = [0, 98304, 131072]
TAB = SG[2] + 24576
STX = TAB + 4096
L_MODE = 192
L_CNT, L_CNT2, L_REC, L_TOP, L_SCR, L_TAB, L_S5 = 0, 4, 64, 128, 1024, 2048, 4096
WOI, DNI, GUI = 8192, 90112, 106496
XW = 20480
XR = [0, 272, 640, 912]
LDS_BYTES = 163840

k = KB()
stamp_names = {"C": [], "H": []}
prog = ["C"]
vSTAMP = 15
pending = [None]


def flush_stamp():
    if pending[0] is not None:
        idx, reg = pending[0]
        k(f"s_sub_u32 s{reg}, s{reg}, s100")
        k(f"v_writelane_b32 v{vSTAMP}, s{reg}, {idx+2}")
        pending[0] = None


def stamp(name):
    if not STAMP or LIGHT:
        return
    flush_stamp()
    n = len(stamp_names[prog[0]])
    reg = 48 + 2 * (n & 1)
    k(f"s_memtime s[{reg}:{reg+1}]")
    pending[0] = (n, reg)
    stamp_names[prog[0]].append(name)


def finish():
    if STAMP:
        flush_stamp()
        k(f"s_memrealtime s[48:49]")
        k(f"s_memtime s[50:51]")
        k.wait_lg()
        k(f"s_sub_u32 s50, s50, s100")
        k(f"v_writelane_b32 v{vSTAMP}, s50, 62")
        k(f"v_writelane_b32 v{vSTAMP}, s100, 61")
        k(f"v_writelane_b32 v{vSTAMP}, s48, 1")
        k(f"v_writelane_b32 v{vSTAMP}, s{sSPIN}, 63")
        k(f"v_lshlrev_b32 v14, 2, v0")
        k(f"s_lshl_b32 s{sT0}, s2, 11")
        k(f"s_add_u32 s{sT0}, s{sT0}, {DBG}")
        k(f"buffer_store_dword v{vSTAMP}, v14, {srd(sWS)}, s{sT0} offen")
    k("s_endpgm")


def bf16r(v):
    return [f"v_cvt_pk_bf16_f32 v{v}, v{v}, v{v}", f"v_and_b32 v{v}, 0xffff0000, v{v}"]


def emit(lst):
    t = None
    for s_ in lst:
        r = k(s_)
        if r is not None:
            t = r
    return t


tail_blocks = []
extra_blocks = []


def poll(name, loads, check, first_tok="issue", sleep=1, fallback=(), at_toggle=()):
    lp, lc, lo = f"L_{name}_p", f"L_{name}_c", f"L_{name}_o"
    flush_stamp()
    if first_tok == "issue":
        first_tok = emit(loads())
    k.wait_vm(first_tok)
    tail_blocks.append((lp, lc, lo, loads(), sleep, fallback, at_toggle))
    k.label(lc)
    check()
    k("s_cmp_lg_u64 vcc, 0")
    k(f"s_cbranch_scc1 {lp}")
    k.label(lo)


def emit_tail_blocks():
    for lab, body, back in extra_blocks:
        k.vm, k.lg, k.hist = [], [], []
        k.label(lab)
        emit(body)
        k("s_nop 1")
        k(f"s_branch {back}")
    for lp, lc, lo, loads, sleep, fallback, at_toggle in tail_blocks:
        k.vm, k.lg, k.hist = [], [], []
        k.label(lp)
        k(f"s_add_u32 s{sSPIN}, s{sSPIN}, 1")
        k(f"s_cmp_ge_u32 s{sSPIN}, {SPIN_MAX}")
        k(f"s_cbranch_scc1 {lo}")
        k("s_nop 7")
        if fallback:
            k(f"s_and_b32 s{sT0}, s{sSPIN}, 15")
            k(f"s_cbranch_scc1 {lp}_n")
            for r in fallback:
                k(f"s_xor_b32 s{r}, s{r}, {LOCX}")
            emit(at_toggle)
            k.label(f"{lp}_n")
        if sleep:
            k(f"s_sleep {sleep}")
        emit(loads)
        k.force_wait(vm=0)
        k(f"s_branch {lc}")


def tagbyte_check(base, n, t, extra=None):
    for i in range(n):
        k(f"v_xor_b32 v{base+i}, s{TAGB[i&3]}, v{base+i}")
        if i == 1:
            k(f"v_or_b32 v{t}, v{base}, v{base+1}")
        elif i & 1:
            k(f"v_or3_b32 v{t}, v{base+i-1}, v{base+i}, v{t}")
    if extra is not None:
        k(f"v_or_b32 v{t}, v{t}, v{extra}")
    k(f"v_and_b32 v{t}, 0xff, v{t}")
    k(f"v_cmp_ne_u32 vcc, 0, v{t}")


def box_values(b, one):
    o = []
    for j in range(0, 4, 2):
        o += [f"v_pk_add_f32 v[{b+j}:{b+j+1}], v[{b+j}:{b+j+1}], v[{b+4+j}:{b+5+j}]",
              f"v_pk_add_f32 v[{b+8+j}:{b+9+j}], v[{b+8+j}:{b+9+j}], v[{b+12+j}:{b+13+j}]"]
    for j in range(0, 4, 2):
        o.append(f"v_pk_add_f32 v[{b+j}:{b+j+1}], v[{b+j}:{b+j+1}], v[{b+8+j}:{b+9+j}]")
    for rnd in range(2):
        o += [f"v_cvt_pk_bf16_f32 v{b+4}, v{b}, v{b+1}", f"v_cvt_pk_bf16_f32 v{b+5}, v{b+2}, v{b+3}",
              f"v_lshlrev_b32 v{b}, 16, v{b+4}", f"v_and_b32 v{b+1}, 0xffff0000, v{b+4}",
              f"v_lshlrev_b32 v{b+2}, 16, v{b+5}", f"v_and_b32 v{b+3}, 0xffff0000, v{b+5}"]
        if rnd == 0:
            o += [f"v_add_f32 v{b+j}, v{b+j}, v{one}" for j in range(4)]
    return o


def ln_chain(s, q, rs):
    return [f"v_mul_f32 v{s}, 0xbb000000, v{s}", f"v_mul_f32 v{q}, 0x3b000000, v{q}", f"v_fma_f32 v{q}, -v{s}, v{s}, v{q}",
            f"v_max_f32 v{q}, 0, v{q}", f"v_add_f32 v{q}, 0x3727c5ac, v{q}", f"v_rsq_f32 v{rs}, v{q}", f"v_mul_f32 v{rs+1}, v{s}, v{rs}"]


def zip2(a, b):
    o = []
    for x, y in zip(a, b):
        o += [x, y]
    return o


def dpp8(regs):
    return [f"v_add_f32_dpp v{r}, v{r}, v{r} {m}{FM}" for m in ("quad_perm:[1,0,3,2]", "quad_perm:[2,3,0,1]", "row_half_mirror") for r in regs]


def mf16(d, A, B, first):
    c = "0" if first else f"v[{d}:{d+3}]"
    return f"v_mfma_f32_16x16x32_bf16 v[{d}:{d+3}], {A}, {B}, {c}"


def mf32(d, A, B, C):
    return f"v_mfma_f32_32x32x16_bf16 v[{d}:{d+15}], {A}, {B}, {C}"


def R4(r):
    return f"v[{r}:{r+3}]"


def top2(hi, lo, t, steps, fill_=()):
    fill_ = list(fill_)
    for mode in steps:
        k(f"v_min_u32_dpp v{t}, v{hi}, v{hi} {mode}")
        k(f"v_max_u32_dpp v{t+1}, v{lo}, v{lo} {mode}")
        k(f"v_max_u32_dpp v{hi}, v{hi}, v{hi} {mode}")
        k(f"v_max_u32 v{lo}, v{t}, v{t+1}")
        if fill_:
            k(fill_.pop(0))
    return fill_


ST16 = ["quad_perm:[1,0,3,2]" + FM, "quad_perm:[2,3,0,1]" + FM, "row_half_mirror" + FM, "row_mirror" + FM]
BC = ["row_bcast:15 row_mask:0xa bank_mask:0xf", "row_bcast:31 row_mask:0xc bank_mask:0xf"]

if STAMP:
    k("s_memtime s[100:101]")
    k("s_memrealtime s[90:91]")
k(f"s_getpc_b64 s[{sPC}:{sPC+1}]")
k.raw("L_pc:")
for s_, off in ((sX, 0), (sWM, 72), (sCC, 64), (sWS, 96), (sWQ, 8)):
    k(f"s_load_dwordx2 s[{s_}:{s_+1}], s[0:1], {off}")
k(f"v_lshrrev_b32 v2, 8, v0")
k(f"v_mul_u32_u24 v2, L_helper-L_pc-4096-448, v2")
if opt("CPF", 0):
    k(f"s_lshl_b32 s3, s2, 4")
    k(f"s_and_b32 s3, s3, 0xf80")
    k(f"v_and_b32 v1, 0x100, v0")
    k(f"v_lshlrev_b32 v1, 4, v1")
    k(f"v_add3_u32 v1, v1, v2, s3")
else:
    k(f"v_lshl_add_u32 v1, v0, 4, v2")
k(f"global_load_dwordx4 v[56:59], v1, s[{sPC}:{sPC+1}] offset:384")
k("s_cmpk_ge_u32 s2, 256")
k("s_cbranch_scc1 L_exit")
k(f"s_mov_b32 s{sPC+3}, 0x20000")
k(f"v_mov_b32 v1, {HB}")
k(f"v_mov_b32 v2, 0")
k(f"ds_write_b32 v1, v2")
vL, vR8, vC8 = 4, 5, 6
k(f"v_lshrrev_b32 v1, 6, v0")
k(f"v_and_b32 v{vL}, 63, v0")
k(f"v_readfirstlane_b32 s{sV}, v1")
k(f"v_bfe_u32 v{vR8}, v0, 3, 3")
k(f"v_and_b32 v{vC8}, 7, v0")
for s_, n in ((sWM, 512 * 6144), (sCC, 1024), (sX, 2048 * 1024)):
    k(f"s_mov_b32 s{s_+2}, {n}")
    k(f"s_mov_b32 s{s_+3}, s{sPC+3}")
k(f"s_lshr_b32 s{sHF}, s{sV}, 2")
k(f"s_and_b32 s{sV}, s{sV}, 3")
k(f"s_bfe_u32 s{sROT}, s2, 0x30003")
k(f"s_and_b32 s{sTB}, s2, 6")
k(f"s_lshl2_add_u32 s{sTB}, s{sTB}, s{sROT}")
k(f"s_lshr_b32 s{sT0}, s2, 6")
k(f"s_add_u32 s{sROT}, s{sT0}, s{sROT}")
k(f"s_and_b32 s{sHG}, s2, 1")
k(f"s_lshl2_add_u32 s{sHG}, s{sHG}, s{sT0}")
vMO, vMC = 7, 8


def mod_addr(su, a=sT0, b=sT1, c=sT2):
    return [f"s_and_b32 s{a}, s{su}, 3", f"s_lshl2_add_u32 s{a}, s{a}, s{sV}", f"s_lshl_b32 s{b}, s{a}, 6",
            f"s_mul_i32 s{a}, s{a}, {32*6144}", f"s_lshr_b32 s{c}, s{su}, 2", f"s_lshl_b32 s{c}, s{c}, 7",
            f"s_add_u32 s{a}, s{a}, s{c}"]


vX0 = 24
k(f"v_lshlrev_b32 v2, 4, v{vC8}")
k(f"v_lshl_add_u32 v{vX0}, v{vR8}, 10, v2")
k(f"s_lshl2_add_u32 s{sT3}, s{sTB}, s{sV}")
k(f"s_lshl_b32 s{sT3}, s{sT3}, 14")
k(f"v_add_u32 v{vX0}, s{sT3}, v{vX0}")
k(f"v_add_u32 v{vX0+1}, 0x2000, v{vX0}")
k(f"s_movk_i32 s{sT5}, 0x380")
k(f"s_lshl2_add_u32 s{sT4}, s{sHF}, s{sROT}")
k(f"s_lshl_b32 s{sT4}, s{sT4}, 7")
k(f"s_or_b32 s{sT0}, s{sT0}, s{sHF}")
k("s_cbranch_scc1 L_x")
k(f"v_mul_u32_u24 v{vMO}, {4*6144}, v{vR8}")
k(f"v_add_u32 v{vMO}, v{vMO}, v2")
k(f"v_lshlrev_b32 v{vMC}, 3, v{vR8}")
emit(mod_addr(2))
MO = 176
k(f"buffer_load_dwordx2 v[{MO+32}:{MO+33}], v{vMC}, {srd(sCC)}, s{sT1} offen")
for i in range(4):
    k(f"buffer_load_dwordx4 {R4(MO+16+4*i)}, v{vMO}, {srd(sWM)}, s{sT0} offen nt")
    if i < 3:
        k(f"s_addk_i32 s{sT0}, 6144")
k("s_branch L_x2")
k.label("L_x")
k.force_wait(lg=0)
if opt("XDELAY", 4):
    k(f"s_sleep {opt('XDELAY', 4)}")
k.label("L_x2")
vXR, vXN, vTB = 96, 128, 64
sXOFF = 72


def x_loads(j):
    return [f"buffer_load_dwordx4 {R4(vXR+(j*2+rg)*4)}, v{vX0+rg}, {srd(sX)}, s{sXOFF+j} offen" for rg in range(2)]


for j in range(4):
    if j:
        k(f"s_addk_i32 s{sT4}, 128")
    k(f"s_and_b32 s{sXOFF+j}, s{sT4}, s{sT5}")
    if j < 1:
        emit(x_loads(j))
if opt("WSO", 0):
    k(f"s_add_u32 s{sWS}, s{sWS}, {opt('WSO', 0) << 20}")
    k(f"s_addc_u32 s{sWS+1}, s{sWS+1}, 0")
k(f"s_load_dword s{sRAW}, s[{sWS}:{sWS+1}], {CTL}")
k("s_barrier")
k.raw("L_open_end:")
vHW, vTRD, vON2, vSX = 26, 28, 29, 30


def common_setup(use):
    for s_, off in ((sWO, 16), (sWR, 32), (sGA, 40), (sUP, 48), (sDN, 56), (sOUT, 80)):
        if s_ in use:
            k(f"s_load_dwordx2 s[{s_}:{s_+1}], s[0:1], {off}")
    for s_, n in ((sWS, WS_BYTES), (sWO, 512 * 1024), (sWR, 1024), (sGA, 512 * 3584), (sUP, 512 * 3584),
                  (sDN, 1792 * 1024), (sOUT, 2048 * 1024)):
        if s_ in use:
            k(f"s_mov_b32 s{s_+2}, {n}")
            k(f"s_mov_b32 s{s_+3}, s{sX+3}")
    k(f"s_mov_b32 s{sSPIN}, 0")
    if STAMP:
        k(f"v_mov_b32 v{vSTAMP}, 0")
    emit([f"v_mov_b32 v{vON2}, {ONES:#x}",
          f"s_lshl_b32 s{sT0}, s{sHF}, 11", f"s_add_u32 s{sT0}, s{sT0}, {TAB}", f"v_lshl_add_u32 v{vTRD}, v{vC8}, 5, s{sT0}",
          f"s_lshl1_add_u32 s{sT0}, s{sV}, s{sHF}", f"s_lshl_b32 s{sT0}, s{sT0}, 7", f"s_add_u32 s{sT0}, s{sT0}, {STX}",
          f"v_lshl_add_u32 v{vSX}, v{vR8}, 4, s{sT0}", f"v_xor_b32 v{vSX+1}, 128, v{vSX}"])


k(f"s_cmp_lg_u32 s{sHF}, 0")
k("s_cbranch_scc1 L_helper")
snap = (list(k.vm), list(k.lg))


def tagcalc(early=False):
    k.force_wait(lg=0)
    if STAMP and not early:
        k(f"v_writelane_b32 v{vSTAMP}, s90, 0")
    k(f"s_mul_i32 s{sTAG}, s{sRAW}, 1664525")
    k(f"s_add_u32 s{sTAG}, s{sTAG}, 1013904223")
    if early:
        return
    k(f"s_and_b32 s{sTG0}, s{sTAG}, 0xff")
    k(f"s_bfe_u32 s{sTG1}, s{sTAG}, 0x80008")
    k(f"s_bfe_u32 s{sTG2}, s{sTAG}, 0x80010")
    k(f"s_lshr_b32 s{sTG3}, s{sTAG}, 24")


def mod_prepare(su, cnt, scratch, o, sb):
    emit([f"v_lshrrev_b32 v{o+34}, 4, v{vL}", f"v_lshlrev_b32 v{o+34}, 3, v{o+34}", f"v_lshl_add_u32 v{o+34}, v{vC8}, 5, v{o+34}",
          f"s_lshl_b32 s{sT0}, s{sV}, 8", f"s_add_u32 s{sT0}, s{sT0}, {scratch}", f"v_add_u32 v{o+34}, s{sT0}, v{o+34}",
          f"v_lshlrev_b32 v{o+35}, 2, v{vL}", f"v_add_u32 v{o+36}, {scratch}, v{o+35}",
          f"v_and_b32 v{o+37}, 3, v{vL}", f"v_lshlrev_b32 v{o+37}, 3, v{o+37}",
          f"v_mov_b32 v{o+38}, 0xff", f"v_mov_b32 v{o+39}, {cnt}",
          f"s_lshr_b32 s{sT0}, s{su}, 6", f"s_lshl_b32 s{sT0}, s{sT0}, 14", f"s_and_b32 s{sT1}, s{su}, 31",
          f"s_lshl_b32 s{sT1}, s{sT1}, 9", f"s_add_u32 s{sT0}, s{sT0}, s{sT1}", f"s_and_b32 s{sT1}, s{su}, 32",
          f"s_lshl3_add_u32 s{sT0}, s{sT1}, s{sT0}", f"s_add_u32 s{sb}, s{sT0}, {MODBOX}"])


def mod_silu(o, d=None):
    d = o + 16 if d is None else d
    k(f"v_lshlrev_b32 v{o+40}, 16, v{d+16}")
    k(f"v_and_b32 v{o+41}, 0xffff0000, v{d+16}")
    k(f"v_lshlrev_b32 v{o+42}, 16, v{d+17}")
    k(f"v_and_b32 v{o+43}, 0xffff0000, v{d+17}")
    for f_ in (lambda i: f"v_mul_f32 v{o+44+i}, 0xbfb8aa3b, v{o+40+i}", lambda i: f"v_exp_f32 v{o+44+i}, v{o+44+i}",
               lambda i: f"v_add_f32 v{o+44+i}, 1.0, v{o+44+i}", lambda i: f"v_rcp_f32 v{o+44+i}, v{o+44+i}",
               lambda i: f"v_mul_f32 v{o+40+i}, v{o+40+i}, v{o+44+i}"):
        for i in range(4):
            k(f_(i))
    for i in range(4):
        k(f"v_cvt_pk_bf16_f32 v{o+48+2*i}, v{o+40+i}, 0")
        k(f"v_cvt_pk_bf16_f32 v{o+49+2*i}, 0, v{o+40+i}")


def mod_dot(o, tag=False, d=None):
    d = o + 16 if d is None else d
    for i in range(4):
        for j in range(8):
            c_ = "0" if i == 0 else f"v{o+56+j}"
            k(f"v_dot2_f32_bf16 v{o+56+j}, v{d+4*i+j//2}, v{o+48+2*i+(j&1)}, {c_}")
    k(f"v_mov_b32 v{o+40}, 1")
    if tag:
        tagcalc(True)
    k(f"v_lshrrev_b32 v{o+37}, v{o+37}, s{sTAG}")
    for j in range(4):
        k(f"v_permlane32_swap_b32 v{o+56+j}, v{o+60+j}")
    for j in range(4):
        k(f"v_add_f32 v{o+56+j}, v{o+56+j}, v{o+60+j}")
    for j in range(2):
        k(f"v_permlane16_swap_b32 v{o+56+j}, v{o+58+j}")
    for j in range(2):
        k(f"v_add_f32 v{o+56+j}, v{o+56+j}, v{o+58+j}")
    for j in range(2):
        k(f"v_add_f32_dpp v{o+56+j}, v{o+56+j}, v{o+56+j} row_ror:8{FM}")


def mod_publish(o, sb, done):
    k(f"ds_write_b64 v{o+34}, v[{o+56}:{o+57}]")
    k("s_mov_b64 exec, 1")
    k(f"ds_add_rtn_u32 v{o+40}, v{o+39}, v{o+40}")
    k("s_mov_b64 exec, -1")
    k(f"ds_read2st64_b32 v[{o+56}:{o+57}], v{o+36} offset0:0 offset1:1")
    k(f"ds_read2st64_b32 v[{o+58}:{o+59}], v{o+36} offset0:2 offset1:3")
    k(f"v_readfirstlane_b32 s{sT1}, v{o+40}")
    k(f"v_add_f32 v{o+56}, v{o+56}, v{o+57}")
    k(f"v_add_f32 v{o+58}, v{o+58}, v{o+59}")
    k(f"s_cmp_lg_u32 s{sT1}, 3")
    k(f"s_cselect_b32 s{sT1}, {BIG}, 0")
    k(f"v_add_f32 v{o+56}, v{o+56}, v{o+58}")
    k(f"v_or_b32 v{o+35}, s{sT1}, v{o+35}")
    k(f"v_bfi_b32 v{o+56}, v{o+38}, v{o+37}, v{o+56}")
    k(f"buffer_store_dword v{o+56}, v{o+35}, {srd(sWS)}, s{sb} offen sc1")
    k(f"s_branch {done}")


def dummy_store(r):
    k.raw(f"    v_mov_b32 v{r}, {BIG}")
    k.raw(f"    buffer_store_dword v{r}, v{r}, {srd(sWS)}, 0 offen")


def ln_loop(later):
    for j in range(4):
        for rg in range(2):
            for i in range(4):
                r = vXR + (j * 2 + rg) * 4 + i
                first = j == 0 and i == 0
                k(f"v_dot2_f32_bf16 v{16+2*rg}, v{r}, v{vON2}, " + ("0" if first else f"v{16+2*rg}"))
                if first and rg == 0:
                    stamp("x0")
                k(f"v_lshlrev_b32 v{vXN+(j*2+rg)*8+2*i}, 16, v{r}")
                k(f"v_dot2_f32_bf16 v{17+2*rg}, v{r}, v{r}, " + ("0" if first else f"v{17+2*rg}"))
                k(f"v_and_b32 v{vXN+(j*2+rg)*8+2*i+1}, 0xffff0000, v{r}")
        if j in later:
            later[j]()
    emit(dpp8(range(16, 20)))
    k(f"ds_write_b128 v{vSX}, v[16:19]")
    stamp("x_in")


def tab_read(j):
    return [f"ds_read_b128 {R4(vTB+16*j+8*wh+4*q)}, v{vTRD} offset:{j*512+wh*256+16*q}" for wh in range(2) for q in range(2)]


def ln_finish():
    flush_stamp()
    k(f"ds_read_b128 v[20:23], v{vSX+1}")
    emit([f"v_add_f32 v{16+i}, v{16+i}, v{20+i}" for i in range(4)] + zip2(ln_chain(16, 17, 20), ln_chain(18, 19, 22)))
    for n in range(8):
        rg = n & 1
        for i in range(4):
            r = vXN + n * 8 + 2 * i
            k(f"v_pk_fma_f32 v[{r}:{r+1}], v[{r}:{r+1}], v[{20+2*rg}:{21+2*rg}], v[{20+2*rg}:{21+2*rg}] op_sel:[0,0,1] op_sel_hi:[1,0,1]")
    stamp("xn")


def h_conv(j, rg):
    r = vXN + (j * 2 + rg) * 8
    sa, a_ = vTB + 16 * j, vTB + 16 * j + 8
    out = [f"v_pk_fma_f32 v[{r+2*i}:{r+2*i+1}], v[{r+2*i}:{r+2*i+1}], v[{a_+2*i}:{a_+2*i+1}], v[{sa+2*i}:{sa+2*i+1}]" for i in range(4)]
    out += [f"v_cvt_pk_bf16_f32 v{r+i}, v{r+2*i}, v{r+2*i+1}" for i in range(4)]
    return out


def h_phase(mid=None):
    flush_stamp()
    emit(tab_read(0) + tab_read(1) + tab_read(2) + tab_read(3))
    for n in range(8):
        emit(h_conv(n >> 1, n & 1))
        if mid and n in mid:
            mid[n]()
    stamp("h_v")
    k(f"s_lshl2_add_u32 s{sT0}, s{sHF}, s{sV}")
    k(f"s_lshl_b32 m0, s{sT0}, 13")
    k("s_nop 0")
    for n in range(8):
        for i in range(4):
            k(f"ds_write_addtid_b32 v{vXN+8*n+i} offset:{HB+n*1024+i*256}")
    stamp("h_w")


GROUPS = [[("k", 0), ("v", 0), ("k", 1), ("v", 1)], [("k", 2), ("v", 2), ("k", 3), ("v", 3)],
          [("k", p) for p in range(4, 8)], [("v", p) for p in range(4, 8)],
          [("q", 4), ("q", 0), ("q", 5), ("q", 1)], [("q", 6), ("q", 2), ("q", 7), ("q", 3)]]
STEPS = [(p_, ks) for ks in range(8) for p_ in "kv"] + [("k", ks) for ks in range(8, 16)] + [("v", ks) for ks in range(8, 16)] + \
        [("q", ks + o_) for ks in range(8) for o_ in (8, 0)]

vTR, vTR2, vHR = 12, 13, 7
vOK, vOV, vOC = 1, 3, 14
sKO = 80
KD = [4, 40, 72, 76]
KS = [59, 60, 61, 62]
sOD, sOC = 81, 101
MREG = [64, 66, 68, 70, 82, 84, 86, 88, 90, 92, 94, 8, 10, 12, 14, 16]
vTW, vONE, vPA, vP = 36, 37, 38, 40


def mod_loads():
    return [f"buffer_load_dwordx4 {R4(vP+4*i)}, v{vPA}, {srd(sWS)}, s{sT3} offen offset:{i*512} sc1" for i in range(4)]


def c_setup():
    emit([f"v_bfe_u32 v1, v{vL}, 4, 1", f"v_bfe_u32 v3, v{vL}, 3, 1", f"v_lshrrev_b32 v14, 5, v{vL}", f"v_bfe_u32 v2, v{vL}, 2, 1",
          f"v_lshl_add_u32 v8, v1, 2, v3", f"v_lshl_add_u32 v8, v8, 2, v14", f"v_lshl_add_u32 v8, v8, 1, v2", f"v_lshlrev_b32 v{vTR}, 7, v8",
          f"v_lshl_add_u32 v8, v1, 1, v3", f"v_xor_b32 v8, s{sV}, v8", f"v_lshl_add_u32 v{vTR}, v8, 5, v{vTR}",
          f"v_and_b32 v8, 3, v{vL}", f"v_lshl_add_u32 v{vTR}, v8, 3, v{vTR}", f"v_add_u32 v{vTR2}, {SG[1]}, v{vTR}",
          f"v_lshl_add_u32 v8, v3, 2, v14", f"v_lshl_add_u32 v8, v8, 3, v{vC8}", f"v_lshl_add_u32 v8, v8, 1, v1", f"v_lshlrev_b32 v8, 4, v8",
          f"v_add_u32 v{vHR}, {HB}, v8"])
    emit([f"v_lshrrev_b32 v2, 2, v{vL}", f"v_xor_b32 v2, v2, v{vL}", f"v_and_b32 v2, 4, v2", f"v_cmp_eq_u32 vcc, 0, v2",
          f"v_mov_b32 v2, {ONES:#x}", f"v_lshlrev_b32 v{vOK}, 4, v{vL}",
          f"v_cndmask_b32 v{vOV}, 0, v2, vcc", f"v_lshlrev_b32 v{vOC}, 2, v{vL}",
          f"s_lshl_b32 s{sT0}, s{sTB}, 5", f"s_lshl2_add_u32 s{sT0}, s{sHG}, s{sT0}", f"s_add_u32 s{sT0}, s{sT0}, s{sV}",
          f"s_mul_i32 s{sKO}, s{sT0}, {KVS}", f"s_add_u32 s{sKO}, s{sKO}, {KVBOX}"])
    for bb in range(4):
        emit([f"s_sub_u32 s{sT1}, s{sKO}, {(4-bb)*32*KVS}", f"s_add_u32 s{KD[bb]}, s{sWS}, s{sT1}", f"s_addc_u32 s{KD[bb]+1}, s{sWS+1}, 0",
              f"s_cmp_ge_u32 s{sTB}, {4-bb}", f"s_cselect_b32 s{KD[bb]+2}, {KVS}, 0", f"s_mov_b32 s{KD[bb]+3}, 0x20000"])
    emit([f"s_lshl_b32 s{sT1}, s{sTB}, 5", f"s_add_u32 s{sT0}, s{sT0}, s{sT1}", f"s_lshl_b32 s{sOD}, s{sT0}, 10",
          f"s_add_u32 s{sOD}, s{sOD}, {OBOX}", f"s_and_b32 s{sOC}, s{sT0}, -4", f"s_lshl_b32 s{sOC}, s{sOC}, 8", f"s_lshl2_add_u32 s{sOC}, s{sV}, s{sOC}",
          f"s_add_u32 s{sOC}, s{sOC}, {OCHK}", f"s_lshl_b32 s19, s{sT0}, 8", f"s_add_u32 s19, s19, {OCHK}",
          f"s_lshl_b32 s18, s{sT0}, 8", f"s_add_u32 s18, s18, {OFLG}",
          f"s_and_b32 s36, s2, 1", f"s_lshl_b32 s36, s36, 13", f"s_add_u32 s36, s36, s{sOC}", f"s_add_u32 s36, s36, {OFLG-OCHK}"])
    emit([f"s_lshl3_add_u32 s34, s{sTB}, s{sHG}", f"s_lshl_b32 s34, s34, 8", f"s_add_u32 s34, s34, {KFLG}",
          f"v_min_u32 v9, 1, v0", f"v_lshlrev_b32 v9, 30, v9", f"v_mov_b32 v8, s{sTAG}"])
    emit([f"v_and_b32 v2, 31, v{vL}", f"v_lshrrev_b32 v11, 5, v{vL}", f"v_lshlrev_b32 v11, 2, v11", f"v_sub_u32 v2, v2, v11"])
    for r in range(16):
        k(f"v_cmp_le_i32 s[{MREG[r]}:{MREG[r]+1}], {(r & 3) + 8 * (r >> 2)}, v2")


k(f"s_mov_b32 s{sWS+2}, {WS_BYTES}")
k(f"s_mov_b32 s{sWS+3}, 0x20000")
k("s_cmp_ge_u32 s2, 64")
k("s_cbranch_scc1 L_nomod")
k("s_setprio 3")
if STAMP:
    k.raw("    s_memtime s[82:83]")
mod_prepare(2, HB, HB + 1024, MO, sT0)
if STAMP:
    k.raw("    s_memtime s[84:85]")
mod_silu(MO)
if STAMP:
    k.raw("    s_memtime s[86:87]")
    k.force_wait(vm=2)
    k.raw("    s_memtime s[88:89]")
mod_dot(MO, True)
mod_publish(MO, sT0, "L_moddone")
k.label("L_nomod")
dummy_store(63)
if STAMP:
    for r_ in (82, 84, 86, 88):
        k(f"s_mov_b32 s{r_}, s100")
k.label("L_moddone")
k("s_setprio 0")
if STAMP:
    k.raw("    s_memtime s[94:95]")
emit(x_loads(1))
common_setup((sGA, sUP, sDN))
emit([f"v_lshrrev_b32 v2, 5, v{vL}", f"s_lshl1_add_u32 s{sT1}, s{sV}, s{sROT}", f"v_add_u32 v2, s{sT1}, v2", f"v_and_b32 v2, 7, v2",
      f"v_lshlrev_b32 v2, 11, v2", f"v_and_b32 v{vPA}, 31, v{vL}", f"v_lshl_add_u32 v{vPA}, v{vPA}, 4, v2", f"s_mov_b32 s{sT3}, {MODBOX}",
      f"v_bfe_u32 v2, v{vL}, 4, 1", f"v_cvt_f32_u32 v{vONE}, v2",
      f"s_lshl_b32 s{sT0}, s{sV}, 10", f"s_add_u32 s{sT0}, s{sT0}, {TAB}", f"v_lshl_add_u32 v{vTW}, v{vL}, 4, s{sT0}"])
if STAMP:
    k.raw("    s_memtime s[92:93]")
XL = opt("XL", 4)
for j in range(2, XL):
    emit(x_loads(j))
tagcalc()
if STAMP:
    for nm, rg_ in (("m0", 82), ("m1", 84), ("m2", 86), ("m3", 88), ("setup", 92), ("mod_pub", 94)):
        pending[0] = (len(stamp_names["C"]), rg_)
        stamp_names["C"].append(nm)
        flush_stamp()
def rest_x():
    for j in range(XL, 4):
        emit(x_loads(j))
    k("s_barrier")


ln_loop({0: rest_x})
PE = opt("PE", 0)
if PE:
    tokP = emit(mod_loads())
k.barrier()
ln_finish()
if not PE:
    tokP = emit(mod_loads())
    k("s_barrier")
c_setup()
poll("mod", mod_loads, lambda: tagbyte_check(vP, 16, 2), tokP)
stamp("p_ok")
emit(box_values(vP, vONE))
k(f"ds_write_b128 v{vTW}, {R4(vP)}")
k.wait_lg()
k("s_barrier")
stamp("b1")


ACC = {"k": 16, "v": 32, "q": 16}
accK, accV, accQ = 16, 32, 16
WRING = [88, 92, 120, 124]
vKO, vQ = 96, 120
vCHK, vPM = 248, 240
KC = [254, 253, 114, 115]
ORDER = [3, 2, 1, 0]
h_phase()
k.barrier()
stamp("hB")


def w_tr(n):
    g = n >> 3
    part, ks = STEPS[n]
    u = GROUPS[g].index((part, ks >> 1))
    out = []
    for jj in range(2):
        off = SG[g % 3] + u * 8192 + jj * 2048 + (ks & 1) * 512
        base = vTR
        if off >= SG[1]:
            off -= SG[1]
            base = vTR2
        a = WRING[n & 3] + 2 * jj
        out.append(f"ds_read_b64_tr_b16 v[{a}:{a+1}], v{base} offset:{off}")
    return out


ring = []
for n, (part, ks) in enumerate(STEPS):
    if ks < 8 and part != "v":
        for tt in range(4):
            ring.append((4 * n + tt, 4 * (n + (part == "k")) + tt, ks, tt))
hof = {}
for i, (f0, f1, ks, tt) in enumerate(ring):
    hof[f0] = hof[f1] = 48 + (i % 10) * 4


def hreg(f):
    part, ks = STEPS[f >> 2]
    return 128 + ((ks - 8) * 4 + (f & 3)) * 4 if ks >= 8 else hof[f]


def h_rd(r, ks, tt):
    return f"ds_read_b128 {R4(r)}, v{vHR} offset:{(ks>>3)*32768+tt*8192+((ks>>1)&3)*2048+(ks&1)*512}"


def KR(bb):
    return vKO if bb == 4 else 128 + 8 * bb


def VR(bb):
    return vKO + 8 if bb == 4 else 160 + 8 * bb


def Kt(a):
    return R4(KR(a >> 1) + 4 * (a & 1))


def Vt(a):
    return R4(VR(a >> 1) + 4 * (a & 1))


def SR(bb):
    return 116 if bb == 4 else 208 + 4 * bb


def k_loads(bbs=ORDER):
    o = []
    for bb in bbs:
        o += [f"buffer_load_dwordx4 {R4(KR(bb)+4*t)}, v{vOK}, {srd(KD[bb])}, 0 offen offset:{t*1024} sc1" for t in range(2)]
        o.append(f"buffer_load_dword v{KC[bb]}, v{vOC}, {srd(KD[bb])}, 0 offen offset:2048 sc1")
    return o


def v_loads(bbs=ORDER):
    o = []
    for bb in bbs:
        o += [f"buffer_load_dwordx4 {R4(VR(bb)+4*t)}, v{vOK}, {srd(KD[bb])}, 0 offen offset:{2560+t*1024} sc1" for t in range(2)]
        o.append(f"buffer_load_dword v{vCHK+bb}, v{vOC}, {srd(KD[bb])}, 0 offen offset:2304 sc1")
    return o


def kv_epilogue(acc, dst, off, coff, tmp, is_v):
    ep = ["s_nop 0"] * 4
    for t in range(2):
        for j in range(2):
            ep.append(f"v_cvt_pk_bf16_f32 v{dst+4*t+j}, v{acc+8*t+2*j}, v{acc+8*t+2*j+1}")
            ep.append(f"v_cvt_pk_bf16_f32 v{dst+4*t+2+j}, v{acc+8*t+4+2*j}, v{acc+8*t+4+2*j+1}")
    sw = lambda w, t: [f"v_permlane{w}_swap_b32 v{dst+4*t+j}, v{dst+4*t+2+j}" for j in range(2)]
    if is_v:
        ep += sw(16, 0) + sw(16, 1)
    for t in range(2):
        ep += sw(32 if is_v else 16, t)
        ep.append(f"buffer_store_dwordx4 {R4(dst+4*t)}, v{vOK}, {srd(sWS)}, s{sKO} offen offset:{off+t*1024} sc1")
    ep.append(f"v_add3_u32 v{tmp}, v{dst}, v{dst+1}, s{sTAG}")
    ep += [f"v_add3_u32 v{tmp}, v{dst+2*n}, v{dst+2*n+1}, v{tmp}" for n in range(1, 4)]
    ep.append(f"buffer_store_dword v{tmp}, v{vOC}, {srd(sWS)}, s{sKO} offen offset:{coff} sc1")
    return ep


epk = kv_epilogue(accK, vKO, 0, 2048, 2, False)
epv = kv_epilogue(accV, vKO + 8, 2560, 2304, 11, True)
pm = [f"v_mov_b32 v2, 0xffff"]
pm += [f"v_cndmask_b32 v{vPM+j}, 0, v2, s[{MREG[2*j]}:{MREG[2*j]+1}]" for j in range(8)]
pm += [f"v_cndmask_b32 v{vPM+j}, v{vPM+j}, -1, s[{MREG[2*j+1]}:{MREG[2*j+1]+1}]" for j in range(8)]
KAT = opt("KAT", 180)
kls = k_loads([3, 2])
tokL = {}
flush_stamp()
ri, res = 0, [(ks, tt) for ks in range(8, 16) for tt in range(4)]


def next_ring(m):
    if ri < len(ring) and (ri < 10 or ring[ri - 10][1] < m):
        return h_rd(48 + (ri % 10) * 4, ring[ri][2], ring[ri][3])


emit(w_tr(0))
for _ in range(4):
    k(next_ring(0)); ri += 1
emit(w_tr(1) + w_tr(2))
for _ in range(4):
    k(next_ring(0)); ri += 1
budget = 0.0
for n, (part, ks) in enumerate(STEPS):
    g, j = n >> 3, n & 7
    if j == 5 and g < 5:
        k("s_barrier")
    tr = w_tr(n + 3) if n + 3 < 48 else []
    first = n in (0, 1, 32)
    for tt in range(4):
        f = 4 * n + tt
        W_, H_ = R4(WRING[n & 3]), R4(hreg(f))
        k(mf16(ACC[part] + 4 * tt, *((H_, W_) if part == "v" else (W_, H_)), first))
        if tt == 0 and j == 7 and g < 3:
            k("s_barrier")
        used = 0
        if tt in (0, 2) and tr:
            k(tr[tt >> 1]); used += 1
        budget = min(budget + 0.75, 1.5)
        if budget >= 1:
            r_ = next_ring(f + 1) if (ri < 32 or f >= 112) else None
            need_res = res and 64 + 4 * (res[0][0] - 8) + res[0][1] - f < 14
            if r_ and not need_res:
                k(r_); ri += 1; budget -= 1; used += 1
            elif res:
                ks_, tt_ = res.pop(0)
                k(h_rd(128 + ((ks_ - 8) * 4 + tt_) * 4, ks_, tt_)); budget -= 1; used += 1
        ex = {3: epk, 4: epv}.get(g)
        if ex:
            for _ in range(2 - used if g == 3 else max(1, 2 - used)):
                if ex:
                    k(ex.pop(0))
        elif g == 5 and epv:
            k(epv.pop(0))
        if f == opt("KFAT", 52) and opt("KF", 0):
            k(f"buffer_store_dword v8, v9, {srd(sWS)}, s34 offen sc1")
        if f == KAT and opt("KF", 0):
            k("s_barrier")
        if f >= KAT and tt & 1 and kls:
            tokL[("k", 3 if len(kls) > 3 else 2)] = k(kls.pop(0))
    if j == 7 and (opt("FINE", 0) or g in (1, 5)):
        stamp(f"S{g}")
assert ri == len(ring) and not res and not epk and not epv
assert not kls
QS = 0x3eb8aa3b
qe = pm + [f"v_mul_f32 v{accQ+j}, {QS:#x}, v{accQ+j}" for j in range(16)]
for t in range(2):
    for j in range(2):
        qe.append(f"v_cvt_pk_bf16_f32 v{vQ+4*t+j}, v{accQ+8*t+2*j}, v{accQ+8*t+2*j+1}")
        qe.append(f"v_cvt_pk_bf16_f32 v{vQ+4*t+2+j}, v{accQ+8*t+4+2*j}, v{accQ+8*t+4+2*j+1}")
for t in range(2):
    for j in range(2):
        qe.append(f"v_permlane16_swap_b32 v{vQ+4*t+j}, v{vQ+4*t+2+j}")
SB = [16, 32, 48]
MG = [64, 224]
vCM, vO = 80, 48
vMX = [8, 10]


def Qf(qt):
    return R4(vQ + 4 * qt)


def max_ops(b, qt, first):
    out = []
    for j in range(8):
        m = vMX[qt] + (j & 1)
        if first and j < 2:
            out.append(f"v_max_f32 v{m}, v{b+2*j}, v{b+2*j+1}")
        else:
            out.append(f"v_max3_f32 v{m}, v{b+2*j}, v{b+2*j+1}, v{m}")
    return out


jobs = []
for qt in range(2):
    jobs += [(qt + 8, qt, "diag"), (qt, qt, "far")] + [(a, qt, "full") for a in range(qt + 1, qt + 8)]
bufof = []
nb = 0
for a, qt, kind in jobs:
    if kind == "diag":
        bufof.append(MG[qt])
    else:
        bufof.append(SB[nb % 3]); nb += 1


def p1_mfma(n):
    a, qt, kind = jobs[n]
    return mf32(bufof[n], Kt(a), Qf(qt), "0")


def p1_valu(n):
    a, qt, kind = jobs[n]
    if kind == "diag":
        return []
    if kind == "far":
        o = [f"v_cndmask_b32 v{MG[qt]+r}, v{bufof[n]+r}, v{MG[qt]+r}, s[{MREG[r]}:{MREG[r]+1}]" for r in range(16)]
        return o + max_ops(MG[qt], qt, True)
    return max_ops(bufof[n], qt, False)


def row_max_finish(qt):
    m = vMX[qt]
    return [f"v_max_f32 v{m}, v{m}, v{m+1}", f"v_mov_b32 v{m+1}, v{m}", f"v_permlane32_swap_b32 v{m}, v{m+1}",
            f"v_max_f32 v{m}, v{m}, v{m+1}", f"v_sub_f32 v{m}, 0, v{m}", f"v_mov_b32 v{m+1}, v{m}"]


def cm_fill(qt):
    return [f"v_mov_b64 v[{vCM+2*j}:{vCM+2*j+1}], v[{vMX[qt]}:{vMX[qt]+1}]" for j in range(8)]


def exp_cvt(b):
    o = []
    for j in range(8):
        o += [f"v_exp_f32 v{b+2*j}, v{b+2*j}", f"v_exp_f32 v{b+2*j+1}, v{b+2*j+1}"]
        if j:
            o.append(f"v_cvt_pk_bf16_f32 v{b+j-1}, v{b+2*j-2}, v{b+2*j-1}")
    o.append(f"v_cvt_pk_bf16_f32 v{b+7}, v{b+14}, v{b+15}")
    return o


def o_finish(qt, late):
    b = vO
    o = [f"v_rcp_f32 v{b+8}, v{vLS}", f"s_add_u32 s{sT0}, s{sOD}, {qt*32768}", f"s_add_u32 s{sT1}, s{sOC if late else 19}, {qt*8192}"]
    if late:
        o += [f"s_add_u32 s{sT0}, s{sT0}, s{sMODE}", f"s_add_u32 s{sT1}, s{sT1}, s{sMODE}"]
    o += [f"v_pk_add_f32 v[{b+j}:{b+j+1}], v[{b+j}:{b+j+1}], v[{vO2+8+j}:{vO2+9+j}]" for j in range(0, 8, 2)]
    o += [f"v_pk_mul_f32 v[{b+j}:{b+j+1}], v[{b+j}:{b+j+1}], v[{b+8}:{b+9}] op_sel_hi:[1,0]" for j in range(0, 8, 2)]
    o += [f"v_cvt_pk_bf16_f32 v{b+12+j}, v{b+2*j}, v{b+2*j+1}" for j in range(4)]
    if late:
        return o
    return o + o_stores(vOC, " sc1")


def o_stores(vc, fl):
    b = vO
    return [f"buffer_store_dwordx4 {R4(b+12)}, v{vOK}, {srd(sWS)}, s{sT0} offen{fl}",
            f"v_add3_u32 v{b+8}, v{b+12}, v{b+13}, s{sTAG}", f"v_add3_u32 v{b+8}, v{b+14}, v{b+15}, v{b+8}",
            f"buffer_store_dword v{b+8}, v{vc}, {srd(sWS)}, s{sT1} offen{fl}"] + \
        ([f"buffer_store_dword v12, v13, {srd(sWS)}, s36 offen{fl}"] if vc == vOK and opt("LF", 0) else [])


CM = f"v[{vCM}:{vCM+15}]"
vO2, vLS = 192, 112


def pv(a, p, first=False):
    out = []
    for hf_, d in enumerate((vO, vO2)):
        out.append(mf32(d, Vt(a), R4(p + 4 * hf_), "0" if first else f"v[{d}:{d+15}]") + "\n" +
                   mf16(vLS, R4(SR(a >> 1)), R4(p + 4 * hf_), first and hf_ == 0))
    return out
sROLE = 38
vGU = 7


sMODE = 39
vT = 64
o_flag = [f"buffer_store_dword v12, v13, {srd(sWS)}, s18 offen sc1"]
tail_setup = [f"s_bfe_u32 s35, s2, 0x30003", f"s_lshr_b32 s{sT0}, s2, 6", f"s_lshl2_add_u32 s35, s35, s{sT0}",
              f"s_and_b32 s{sROLE}, s2, 7", f"s_mul_i32 s{sROLE}, s{sROLE}, 14", f"s_add_u32 s{sROLE}, s{sROLE}, s35",
              f"v_lshrrev_b32 v2, 1, v{vL}", f"v_mul_u32_u24 v{vGU}, 3584, v2", f"v_and_b32 v2, 1, v{vL}", f"v_lshl_add_u32 v{vGU}, v2, 4, v{vGU}"]
emit(qe[len(pm):])
k(mf32(16, Kt(8), Qf(0), "0"))
k(mf32(32, Kt(9), Qf(1), "0"))
VPRE = opt("VPRE", 3)
LQ = [(x, s_) for x in (("v", 3), ("k", 1), ("v", 2), ("k", 0), ("v", 1), ("v", 0)) for s_ in (k_loads if x[0] == "k" else v_loads)([x[1]])]
vl = list(LQ)


def v_issue(n):
    for _ in range(n):
        if vl:
            x, s_ = vl.pop(0)
            tokL[x] = k(s_)
            if not vl:
                fstamp("preB")
                emit(["s_barrier", f"v_mov_b32 v2, 0", f"ds_read_b32 v2, v2 offset:{L_MODE}"])


def fstamp(n):
    if opt("FINE", 0):
        stamp(n)


emit(pm + [f"v_mov_b32 v12, s{sTAG}", f"v_lshlrev_b32 v13, 26, v{vL}", f"v_mov_b32 v2, v{vOV}"] +
     [x for bb in range(4) for x in (f"s_cmp_ge_u32 s{sTB}, {4-bb}", f"s_cselect_b32 s{KS[bb]}, s{sTAG}, 0", f"s_cselect_b32 s{sT0}, -1, 0",
                                     f"v_and_b32 v{SR(bb)}, s{sT0}, v2", f"v_and_b32 v{SR(bb)+1}, s{sT0}, v2",
                                     f"v_mov_b64 v[{SR(bb)+2}:{SR(bb)+3}], v[{SR(bb)}:{SR(bb)+1}]")] +
     [f"v_mov_b64 v[{SR(4)+j}:{SR(4)+j+1}], v[2:3]" for j in (0, 2)] +
     [f"v_mov_b32 v2, 0xff800000", f"s_mov_b32 s32, 0x5d800000"])
v_issue(VPRE)
for qt in range(2):
    emit([f"v_cndmask_b32 v{16+16*qt+r}, v2, v{16+16*qt+r}, s[{MREG[r]}:{MREG[r]+1}]" for r in range(16)] + max_ops(16 + 16 * qt, qt, True))
emit(zip2(row_max_finish(0), row_max_finish(1)))
stamp("q_done")


def v_sum(x):
    kind, bb = x
    r0, ck = (KR(bb), KC[bb]) if kind == "k" else (VR(bb), vCHK + bb)
    return [f"v_add3_u32 v252, v{r0+2*n}, v{r0+2*n+1}, " + ("v252" if n else f"s{KS[bb]}") for n in range(4)] + \
           [f"v_cmp_ne_u32 vcc, v252, v{ck}"]


def verify(x):
    assert all(y != x for y, _ in vl), x
    k.wait_vm(tokL[x])
    emit(v_sum(x))


def verdict(x, tagc):
    nm = f"{x[0]}{x[1]}{tagc}"
    k(f"s_cbranch_vccnz L_r{nm}")
    k.label(f"L_g{nm}")
    extra_blocks.append((f"L_r{nm}", [f"s_add_u32 s{sSPIN}, s{sSPIN}, 1", f"s_cmp_ge_u32 s{sSPIN}, {SPIN_MAX}", f"s_cbranch_scc1 L_g{nm}",
                                      f"s_sleep {opt('KRS', 2)}"] + (k_loads if x[0] == "k" else v_loads)([x[1]]) + ["s_waitcnt vmcnt(0)"] +
                         v_sum(x) + ["s_nop 4", f"s_cbranch_vccnz L_r{nm}"], f"L_g{nm}"))


def l_check(published):
    k(f"v_cmp_ngt_f32 vcc, s32, v{vLS}")
    k(f"s_mov_b32 s33, {published}")


def l_branch(published):
    k("s_cbranch_vccnz L_exact")


def fast(order, tagc):
    global vl
    vl = LQ[VPRE:]
    free = [16, 32, 224, 64]
    seq, seen, buf, stops = [], set(), {}, []
    split = lambda l: [x for m in l for x in m.split("\n")]

    def put(need, m):
        if need[1] < 4 and need not in seen:
            seen.add(need)
            back = cnt = 0
            while cnt < 5 and back < len(seq) and seq[-1 - back] not in stops:
                cnt += isinstance(seq[-1 - back], str)
                back += 1
            seq.insert(len(seq) - back, lambda: verify(need))
            seq.extend(["s_nop 0"] * (5 - cnt))
            seq.append(lambda: verdict(need, tagc))
            stops.append(seq[-1])
            if need == ("k", 3):
                seq.append(lambda: stamp("k_in"))
        seq.append(m)

    def s_ops(qt, u):
        return [(("k", 4), (qt, "M"), qt + 8), (("k", 0), (qt, "X"), qt)] if u == "M" else [(("k", u >> 1), (qt, u), u)]

    def put_s(qt, need, key, a):
        buf[key] = free.pop(0)
        put(need, mf32(buf[key], Kt(a), Qf(qt), CM))

    for pos, qt in enumerate(order):
        F = list(range(qt + 7, qt, -1))
        if pos == 0:
            units = F[:6] + ["M", F[6]]
            pv_at = {2: [F[0]], 3: [F[1]], 4: [F[2], F[3]], 5: [F[4]], 6: [F[5]], 7: ["D", "X"]}
            seq += cm_fill(qt)
            put_s(qt, *s_ops(qt, units[0])[0])
            seq.append(lambda: v_issue(3))
        else:
            units = [F[0], "M"] + F[1:]
            pv_at = {1: [F[0]], 2: ["D"], 3: [F[1], "Xa"], 4: [F[2], "Xb"], 5: [F[3]], 6: [F[4]], 7: [F[5]]}
        first = [True]

        def pv_ops(t):
            f_ = first[0]
            first[0] = False
            if t == "D":
                return [(("v", 4), m, None) for m in split(pv(qt + 8, buf[(qt, "M")], f_))]
            if str(t)[0] == "X":
                l = split(pv(qt, buf[(qt, "M")] + 8))
                l = {"X": l, "Xa": l[:2], "Xb": l[2:]}[t]
                return [(("v", 0), m, (qt, "M") if (n_ == len(l) - 1 and t != "Xa") else None) for n_, m in enumerate(l)]
            return [(("v", t >> 1), m, (qt, t) if n_ == 3 else None) for n_, m in enumerate(split(pv(t, buf[(qt, t)], f_)))]

        for i, u in enumerate(units):
            b = buf[(qt, u)]
            body = exp_cvt(b)
            if u == "M":
                far = buf[(qt, "X")]
                body = [f"v_cndmask_b32 v{b+r}, v{far+r}, v{b+r}, s[{MREG[r]}:{MREG[r]+1}]" for r in range(16)] + body
                body += [f"v_bfi_b32 v{b+8+j}, v{vPM+j}, 0, v{b+j}" for j in range(8)]
                body += [f"v_and_b32 v{b+j}, v{vPM+j}, v{b+j}" for j in range(8)]
            ms = [("S",) + x for x in (s_ops(qt, units[i + 1]) if i < 7 else [])]
            pvs = [("P",) + x for t in pv_at.get(i, []) for x in pv_ops(t)]
            ms = pvs + ms if u == "M" else ms + pvs
            if i == 7:
                last = pv_ops(u)
                if pos == 0:
                    ms.insert(6, ("N",) + s_ops(order[1], order[1] + 7)[0])
                ms += [("P",) + x for x in last[:2]]
            cyc = [32 if (m[0] in "SN" or "32x32" in m[2]) else 16 for m in ms]
            span = 23 if u != "M" else 44
            ins_at = {}
            for n_ in range(len(ms)):
                p_ = 1 + sum(cyc[:n_]) * span // max(sum(cyc), 150)
                if u == "M" and ms[n_][0] == "S":
                    p_ = max(p_, 30)
                if pos == 1 and i == 0:
                    p_ += 6
                ins_at.setdefault(p_, []).append(ms[n_])
            for n, s_ in enumerate(body):
                for m in ins_at.get(n, []):
                    if m[0] in "SN":
                        assert m[0] == "S" or n > 9
                        put_s(qt if m[0] == "S" else order[1], *m[1:])
                    else:
                        put(m[1], m[2])
                        if m[3]:
                            free.append(buf[m[3]])
                seq.append(s_)
                if pos == 0 and i == 7 and n < 8:
                    seq.append(cm_fill(order[1])[n])
                if pos == 1 and i == 0 and n == 5:
                    seq += [lambda: l_check(0)]
                if pos == 1 and i == 0 and n == 9:
                    seq += of0[:-4] + [lambda: l_branch(0)] + of0[-4:-3]
                if pos == 1 and i == 0 and n == 15:
                    seq += of0[-3:]
                if u == "M" and n == 15:
                    free.append(far)
                if pos == 0 and n % opt("VGAP", 4) == 3:
                    seq.append(lambda: v_issue(1))
                if pos == 0 and i == 5 and n == 6:
                    seq.append(f"v_readfirstlane_b32 s{sMODE}, v2")
                if pos == 0 and i == opt("F0AT", 7) and n == 2:
                    seq += [f"s_addk_i32 s18, {qt*8192}"] + o_flag
            if i & 1:
                seq.append(lambda pos=pos, i=i: fstamp(f"t{pos}{i}"))
            assert i < 7 or sorted(ins_at)[-2] >= 14
        if pos == 0:
            nx = order[1]
            of0 = o_finish(qt, False)
        seq += [last[3][1], last[2][1]]
        free.append(b)
        if pos == 1:
            of1 = o_finish(qt, True)
            seq += tail_setup + [lambda: l_check(1)] + of1[:5] + [lambda: l_branch(1)] + of1[5:]
    n0 = len(stamp_names["C"])
    for x in seq:
        if callable(x):
            x()
        else:
            k(x)
    assert not vl
    flush_stamp()
    if tagc == "a":
        del stamp_names["C"][n0:]


flush_stamp()
k("s_bitcmp1_b32 s2, 0")
k("s_cbranch_scc1 L_p2b")
st_ = (list(k.vm), list(k.lg))
fast((1, 0), "a")
k("s_branch L_p2e")
k.label("L_p2b")
k.vm, k.lg, k.hist = list(st_[0]), list(st_[1]), []
k("s_nop 1")
fast((0, 1), "b")
k.label("L_p2e")
k(f"s_cmp_eq_u32 s{sMODE}, 0")
k("s_cbranch_scc1 L_ofar")
emit(o_stores(vOK, "" if not opt("ONT", 0) else " nt"))
k.label("L_odone")
extra_blocks.append(("L_ofar", o_stores(vOK, " sc1"), "L_odone"))
def pass2(order):
    SB2 = [16, 32, MG[order[0]]]
    p2 = []
    nb = 0
    pend = []
    for pos, qt in enumerate(order):
        full = list(range(qt + 1, qt + 8))
        bufs = [SB2[(nb + i) % 3] for i in range(7)]
        nb += 7
        b = MG[qt]
        body = [f"v_add_f32 v{b+r}, v{b+r}, v{vMX[qt]}" for r in range(16)]
        body = body[:8] + cm_fill(qt) + body[8:]
        body += exp_cvt(b)
        body += [f"v_bfi_b32 v{b+8+j}, v{vPM+j}, 0, v{b+j}" for j in range(8)]
        body += [f"v_and_b32 v{b+j}, v{vPM+j}, v{b+j}" for j in range(8)]
        ins_at = {}
        for i, m in enumerate(pend):
            ins_at[2 + 4 * i] = m
        ins_at[40] = mf32(bufs[0], Kt(full[0]), Qf(qt), CM)
        for i, s_ in enumerate(body):
            if i in ins_at:
                p2.append(ins_at[i])
            p2.append(s_)
            if pos == 1 and i == 22:
                of = o_finish(order[0], False)
                p2 += of[:-4] + ["s_cmp_eq_u32 s33, 1", f"s_cbranch_scc1 L_xs{order[0]}"] + of[-4:] + [f"L_xs{order[0]}:"]
        pend = pv(qt + 8, b, True) + pv(qt, b + 8)
        for i, a in enumerate(full):
            body = exp_cvt(bufs[i])
            ms = []
            if i + 1 < 7:
                ms.append(mf32(bufs[i + 1], Kt(full[i + 1]), Qf(qt), CM))
            ms += pend
            step = max(1, 24 // len(ms))
            ins_at = {2 + step * n if len(ms) < 5 else 1 + 5 * n: m for n, m in enumerate(ms)}
            last = pos == 1 and i == 6
            for n, s_ in enumerate(body):
                if n in ins_at:
                    p2.append(ins_at[n])
                p2.append(s_)
                if last and n == 17:
                    p2.append(pv(a, bufs[i])[0])
            pend = pv(a, bufs[i])
            if last:
                pend = pend[1:]
    emit(p2 + pend)
    emit(tail_setup)
    emit(o_finish(order[1], True))


def exact_path():
    k.vm, k.lg, k.hist = [], [], []
    k.label("L_exact")
    k("s_nop 15")
    k("s_nop 15")
    for tb in range(4):
        k(f"s_cmp_lg_u32 s{sTB}, {tb}")
        k(f"s_cbranch_scc1 L_xk{tb}")
        r0 = KR(4 - tb)
        for j in range(4):
            k(f"v_readlane_b32 s57, v{r0+j}, 0")
            k(f"v_readlane_b32 s58, v{r0+j}, 32")
            k(f"v_mov_b32 v{16+j}, s58")
            k("s_mov_b32 exec_hi, 0")
            k(f"v_mov_b32 v{16+j}, s57")
            k("s_mov_b64 exec, -1")
        for bb in range(4 - tb):
            for j in range(4):
                k(f"v_mov_b64 v[{KR(bb)+2*j}:{KR(bb)+2*j+1}], v[{16+2*(j&1)}:{17+2*(j&1)}]")
        k.label(f"L_xk{tb}")
    k("s_nop 1")
    issued = 0
    for n in range(len(jobs)):
        va = p1_valu(n)
        while issued < len(jobs) and (issued <= n or (sum(1 for x in range(n + 1, issued) if jobs[x][2] != "diag") < 2 and
                                                      (va or jobs[issued][2] == "diag"))):
            k(p1_mfma(issued)); issued += 1
        emit(va)
    emit(row_max_finish(0) + row_max_finish(1))
    k("s_bitcmp1_b32 s2, 0")
    k("s_cbranch_scc1 L_x2b")
    pass2((1, 0))
    k("s_branch L_p2e")
    k.label("L_x2b")
    k.vm, k.lg, k.hist = [], [], []
    k("s_nop 1")
    pass2((0, 1))
    k("s_branch L_p2e")


exact_code = KB()
k_main = k
k = exact_code
exact_path()
k = k_main
stamp("attn")
flush_stamp()
sK1, sK2, sC1, sC2, sTK1, sTK2 = 66, 67, 68, 69, 70, 71
sP0, sP1 = 58, 59


def top2_poller(t):
    if opt("REP", 0):
        k(f"s_and_b32 s{sT4}, s2, 7")
        k(f"s_lshl_b32 s{sT4}, s{sT4}, 13")
        k(f"s_add_u32 s{sT4}, s{sT4}, {A2BOX}")
    else:
        k(f"s_mov_b32 s{sT4}, {A2BOX}")
    k(f"v_lshlrev_b32 v2, 8, v{vL}")
    k("s_mov_b32 exec_hi, 0")
    poll("a2", lambda: [f"buffer_load_dwordx3 v[{t}:{t+2}], v2, {srd(sWS)}, s{sT4} offen sc1"],
         lambda: k(f"v_cmp_ne_u32 vcc, s{sTAG}, v{t+2}"), sleep=opt("A2SLEEP", 0))
    stamp("a2_ok")
    top2(t, t + 1, t + 2, ST16 + BC[:1])
    k("s_mov_b64 exec, -1")
    flush_stamp()
    k(f"v_mov_b32 v2, 0")
    k("s_lshl_b64 exec, 1, 31")
    k(f"ds_write_b64 v2, v[{t}:{t+1}] offset:{L_TOP}")
    k("s_mov_b64 exec, -1")


def top2_fetch(t):
    k(f"v_mov_b32 v2, 0")
    k.force_wait(lg=0)
    k("s_barrier")
    k(f"ds_read_b64 v[{t}:{t+1}], v2 offset:{L_TOP}")
    k(f"v_readfirstlane_b32 s{sK1}, v{t}")
    k(f"v_readfirstlane_b32 s{sK2}, v{t+1}")
    for sk, st2 in ((sK1, sTK1), (sK2, sTK2)):
        k(f"s_bfe_u32 s{st2}, s{sk}, 0xb0001")
        k(f"s_sub_u32 s{st2}, 2047, s{st2}")


def cand_offsets():
    for sk, sc, st2 in ((sK1, sC1, sTK1), (sK2, sC2, sTK2)):
        k(f"s_lshr_b32 s{sc}, s{st2}, 7")
        k(f"s_bfe_u32 s{sT3}, s{st2}, 0x30003")
        k(f"s_lshl3_add_u32 s{sc}, s{sc}, s{sT3}")
        k(f"s_and_b32 s{sT3}, s{sk}, 1")
        k(f"s_lshl1_add_u32 s{sc}, s{sc}, s{sT3}")
        k(f"s_lshl_b32 s{sc}, s{sc}, 12")


k(f"s_cmp_lt_u32 s35, 14")
k("s_cbranch_scc0 L_not5")
emit([f"s_mul_i32 s{sP0}, s{sV}, {128*3584}", f"s_lshl_b32 s{sP1}, s{sROLE}, 5", f"s_add_u32 s{sP0}, s{sP0}, s{sP1}",
      f"s_lshl_b32 s{sP1}, s{sV}, 13"])
gu = []
PACE = opt("PACE", 0)
for n in range(4):
    gu.append([f"s_waitcnt vmcnt({PACE})", f"buffer_load_dwordx4 {R4(128+4*n)}, v{vGU}, {srd(sGA)}, s{sP0} offen"])
    gu.append([f"s_waitcnt vmcnt({PACE})", f"buffer_load_dwordx4 {R4(144+4*n)}, v{vGU}, {srd(sUP)}, s{sP0} offen",
               f"s_add_u32 s{sP0}, s{sP0}, {32*3584}"])
GUE, GUM = opt("GUE", 1), opt("GUM", 7)
for g in gu[:GUE]:
    emit(g[1:])
k("s_barrier")
vDW, vGF = 64, 96
emit([f"v_bfe_u32 v2, v{vL}, 2, 2", f"v_and_b32 v11, 3, v{vL}", f"v_lshrrev_b32 v8, 4, v{vL}",
      f"v_lshlrev_b32 v9, 8, v2", f"v_lshl_add_u32 v9, v11, 3, v9", f"v_lshl_add_u32 v9, v8, 5, v9",
      f"s_lshl_b32 s{sT3}, s{sV}, 12", f"s_add_u32 s{sT3}, s{sT3}, {DNI}", f"v_add_u32 v9, s{sT3}, v9"])
emit([f"s_mov_b32 s73, s{sT3}", f"v_and_b32 v12, 15, v{vL}", f"v_lshlrev_b32 v12, 4, v12", f"v_lshl_add_u32 v12, v8, 10, v12",
      f"s_lshl_b32 s72, s{sROLE}, 14", f"s_lshl_b32 s{sT3}, s{sV}, 8", f"s_add_u32 s72, s72, s{sT3}"])
emit([f"v_lshl_add_u32 v10, v8, 3, v2", f"v_lshlrev_b32 v10, 5, v10", f"v_lshl_add_u32 v10, v11, 3, v10",
      f"s_add_u32 s{sT3}, s{sP1}, {GUI}", f"v_add_u32 v10, s{sT3}, v10",
      f"v_and_b32 v57, 15, v{vL}", f"v_lshlrev_b32 v57, 4, v57", f"s_lshl_b32 s{sT3}, s{sV}, 8", f"s_add_u32 s{sT3}, s{sT3}, {L_S5}",
      f"v_add_u32 v58, s{sT3}, v57", f"v_bfe_u32 v2, v{vL}, 4, 1", f"v_lshl_add_u32 v57, v2, 3, v57",
      f"s_lshl_b32 s75, s{sROLE}, 12", f"s_lshl_b32 s{sT3}, s{sV}, 10", f"s_add_u32 s75, s75, s{sT3}", f"s_add_u32 s75, s75, {YBOX}",
      f"v_lshlrev_b32 v59, 3, v{vL}", f"v_and_b32 v60, 1, v{vL}", f"v_cmp_eq_u32 s[64:65], 1, v60", f"v_lshlrev_b32 v60, 4, v60",
      f"v_lshrrev_b32 v60, v60, s{sTAG}", f"v_lshrrev_b32 v61, 8, v60", f"v_mov_b32 v62, 0xff",
      f"v_bfe_u32 v63, v{vL}, 1, 3", f"v_cmp_eq_u32 s[78:79], 0, v63", f"v_lshlrev_b32 v63, 26, v63", f"v_lshl_add_u32 v63, v8, 4, v63",
      f"s_lshl_b32 s76, s{sV}, 8", f"s_add_u32 s76, s76, {CANDBOX}", f"s_lshl_b32 s77, s{sV}, 6", f"s_add_u32 s77, s77, {CANDBOX+1024}"])
k(f"s_add_u32 s{sT3}, s{sP1}, {GUI}")
k(f"v_add_u32 v11, s{sT3}, v{vOK}")


def gu_stage(idx):
    for i in idx:
        m, ks = i & 1, i >> 1
        k(f"ds_write_b128 v11, {R4(128+16*m+4*ks)} offset:{m*4096+ks*1024}")
    for i in idx:
        m, ks = i & 1, i >> 1
        for jj in range(2):
            a = vGF + (m * 4 + ks) * 4 + 2 * jj
            k(f"ds_read_b64_tr_b16 v[{a}:{a+1}], v10 offset:{m*4096+ks*1024+jj*128}")


k("s_barrier")
for g in gu[GUE:GUM]:
    emit(g[1:])
k("s_barrier")
gu_stage(range(GUM))
k("s_barrier")
for g in gu[GUM:]:
    emit(g[1:])
for n in range(4):
    k(f"s_add_u32 m0, s73, {n*1024}")
    k(f"buffer_load_dwordx4 v12, {srd(sDN)}, s72 offen nt lds")
    k(f"s_addk_i32 s72, 4096")
gu_stage(range(GUM, 8))
stamp("gu_in")
flush_stamp()
k(f"s_cmp_eq_u32 s{sV}, 0")
k("s_cbranch_scc1 L_poller")
k.label("L_s5go")
top2_fetch(16)
stamp("top2")
cand_offsets()
k(f"v_mov_b32 v2, s{sC1}")
k(f"v_mov_b32 v56, s{sC2}")
k(f"v_cndmask_b32 v56, v2, v56, s[64:65]")
k(f"v_add_u32 v56, v56, v63")


def xs_loads():
    o = [f"buffer_load_dwordx4 {R4(16+4*ks)}, v56, {srd(sWS)}, s76 offen offset:{ks*64} sc1" for ks in range(4)]
    return o + [f"buffer_load_dwordx4 {R4(32)}, v56, {srd(sWS)}, s77 offen sc1"]


def xs_check():
    for ks in range(4):
        for m in range(2):
            k(mf16(40 + 4 * m, R4(16 + 4 * ks), R4(vGF + (m * 4 + ks) * 4), ks == 0))
        k(f"v_add3_u32 v{36+ks}, v{16+4*ks}, v{17+4*ks}, s{sTAG}")
        k(f"v_add3_u32 v{36+ks}, v{18+4*ks}, v{19+4*ks}, v{36+ks}")
    k(f"v_xor_b32 v2, v36, v32")
    for ks in range(1, 4):
        k(f"v_bitop3_b32 v2, v2, v{36+ks}, v{32+ks} bitop3:0xf6")
    k("v_cmp_ne_u32 vcc, 0, v2")
    k("s_and_b64 vcc, vcc, s[78:79]")


k.wait_lg()
emit(xs_loads())
k.force_wait(vm=5)
for c_ in range(2):
    for q in range(4):
        k(f"ds_read_b64_tr_b16 v[{vDW+8*c_+2*q}:{vDW+8*c_+2*q+1}], v9 offset:{q*1024+c_*128}")
poll("xs", xs_loads, xs_check, -1)
stamp("xs_in")
k(f"v_mov_b32 v42, v41")
k(f"v_mov_b32 v41, v44")
k(f"v_mov_b32 v43, v45")
k("s_mov_b64 exec, 0xffff")
k(f"ds_write_b128 v58, v[40:43]")
k("s_mov_b64 exec, -1")
k.barrier()
for w in range(4):
    k(f"ds_read_b64 v[{40+2*w}:{41+2*w}], v57 offset:{L_S5+w*256}")
emit([f"v_pk_add_f32 v[40:41], v[40:41], v[42:43]", f"v_pk_add_f32 v[44:45], v[44:45], v[46:47]",
      f"v_pk_add_f32 v[40:41], v[40:41], v[44:45]", f"v_cvt_pk_bf16_f32 v41, v40, v41", f"v_lshlrev_b32 v40, 16, v41",
      f"v_mul_f32 v42, 0xbfb8aa3b, v40", f"v_exp_f32 v42, v42", f"v_and_b32 v41, 0xffff0000, v41", f"v_add_f32 v42, 1.0, v42",
      f"v_rcp_f32 v42, v42", f"v_mul_f32 v40, v40, v42"] + bf16r(40) +
     [f"v_mul_f32 v40, v40, v41", f"v_mov_b32_dpp v41, v40 quad_perm:[1,0,3,2]{FM}", f"v_cvt_pk_bf16_f32 v40, v40, v41"])
sA = 80
for i in range(8):
    for t in range(2):
        k(f"v_readlane_b32 s{sA+8*t+i}, v40, {16*t+2*i}")
for i in range(8):
    for c_ in range(2):
        for t in range(2):
            d = 48 + 2 * c_ + t
            k(f"v_dot2_f32_bf16 v{d}, v{vDW+8*c_+i}, s{sA+8*t+i}, " + ("0" if i == 0 else f"v{d}"))
for c_ in range(2):
    for t in range(2):
        k(f"v_bfi_b32 v{48+2*c_+t}, v62, v{60+t}, v{48+2*c_+t}")
    k(f"buffer_store_dwordx2 v[{48+2*c_}:{49+2*c_}], v59, {srd(sWS)}, s75 offen offset:{512*c_} sc1")
stamp("y_pub")
finish()

k.label("L_not5")
k.vm, k.lg = [], []
k(f"s_cmp_eq_u32 s{sV}, 0")
k("s_cbranch_scc0 L_fin")
for _ in range(4):
    k("s_barrier")
k.label("L_poller")
top2_poller(16)
k(f"s_cmp_lt_u32 s35, 14")
k("s_cbranch_scc1 L_s5go")
k.barrier()
k.label("L_fin")
finish()

prog[0] = "H"
k.raw(".p2align 6")
k.label("L_helper")
k.vm, k.lg, k.hist = list(snap[0]), list(snap[1]), []
emit(x_loads(1))
sWOFF = 64
vWE = {"q": 10, "k": 32, "v": 34}
vQT = 39
sSL, sG4, sU2, sROLE = 76, 77, 78, 79
LD = 208
sQ0 = 55
emit([f"s_mul_i32 s{sT0}, s{sV}, {16*3072}", f"s_lshl_b32 s{sT1}, s{sHG}, 7", f"s_add_u32 s{sT0}, s{sT0}, s{sT1}",
      f"v_mul_u32_u24 v1, 3072, v{vR8}", f"v_add_u32 v1, s{sT0}, v1", f"s_and_b32 s{sT1}, s{sV}, 2", f"s_lshl_b32 s{sT1}, s{sT1}, 1", f"v_xor_b32 v2, s{sT1}, v{vC8}",
      f"v_lshl_add_u32 v10, v2, 4, v1", f"v_xor_b32 v2, 2, v2", f"v_lshl_add_u32 v11, v2, 4, v1", f"v_add_u32 v11, {8*3072-1024}, v11",
      f"v_add_u32 v32, 1024, v10", f"v_add_u32 v33, 1024, v11", f"v_add_u32 v34, 2048, v10", f"v_add_u32 v35, 2048, v11",
      f"s_lshl_b32 s{sT5}, s{sV}, 11", f"s_mov_b32 s{sT4}, {64*3072}"])


def w_dma(g):
    out = []
    for u, (part, p) in enumerate(GROUPS[g]):
        out.append(f"s_add_u32 m0, s{sT5}, {SG[g%3]+u*8192}")
        out.append(f"buffer_load_dwordx4 v{vWE[part]}, {srd(sWQ)}, s{sWOFF+p} offen lds")
        out.append(f"buffer_load_dwordx4 v{vWE[part]+1}, {srd(sWQ)}, s{sWOFF+p} offen offset:1024 lds")
    return out


for p in range(8):
    emit([f"s_add_u32 s{sT1}, s{sROT}, {p}", f"s_and_b32 s{sT1}, s{sT1}, 7", f"s_mul_i32 s{sWOFF+p}, s{sT1}, s{sT4}"])
    if p == 0:
        emit([f"s_mov_b32 s{sWQ+2}, {512*3072}", f"s_mov_b32 s{sWQ+3}, 0x20000",
              f"s_mov_b64 s[80:81], s[{sPC}:{sPC+1}]", f"s_mov_b32 s82, L_code_end-L_pc", f"s_mov_b32 s83, 0x20000",
              f"s_lshl_b32 s84, s2, 8", f"s_and_b32 s84, s84, 0xf800", f"v_lshlrev_b32 v3, 3, v0"])
emit([f"v_mul_u32_u24 v{vQT}, 3072, v{vL}", f"v_add_u32 v{vQT}, s{sT0}, v{vQT}", f"v_lshrrev_b32 v1, 4, v{vL}",
      f"v_lshl_or_b32 v{vQT}, v1, 26, v{vQT}",
      f"s_lshl_b32 s{sT0}, s2, 4", f"s_and_b32 s{sT0}, s{sT0}, 0x380", f"v_lshl_add_u32 v63, v{vC8}, 4, s{sT0}",
      f"s_sub_u32 s{sU2}, s2, 64", f"s_cmpk_ge_u32 s2, 128", f"s_cselect_b32 s{sU2}, s{sU2}, 0", f"s_cselect_b32 s{sT2}, 0, {BIG}",
      f"v_mul_u32_u24 v{vMO}, {4*6144}, v{vR8}", f"v_lshl_add_u32 v{vMO}, v{vC8}, 4, v{vMO}", f"v_or_b32 v{vMO}, s{sT2}, v{vMO}", f"v_lshlrev_b32 v{vMC}, 3, v{vR8}",
      f"s_lshr_b32 s87, s2, 6", f"s_lshl2_add_u32 s87, s{sV}, s87", f"s_lshl_b32 s87, s87, 15",
      f"s_lshl_b32 s{sT1}, s2, 4", f"s_and_b32 s{sT1}, s{sT1}, 0x380", f"s_add_u32 s87, s87, s{sT1}",
      f"v_lshrrev_b32 v9, {4 if opt(chr(87)+chr(50), 0) else 5}, v{vL}", f"v_lshlrev_b32 v9, 26, v9", f"v_lshl_add_u32 v9, v{vL}, 10, v9"] +
     mod_addr(sU2, 85, 86, sT2))
common_setup((sWS, sWO, sWR, sGA, sUP, sOUT))
stamp("setup")
for j in range(2, XL):
    emit(x_loads(j))
tagcalc()
emit([f"s_getreg_b32 s88, hwreg(HW_REG_XCC_ID, 0, 4)", f"s_and_b32 s89, s2, 7", f"s_lshl_b32 s89, s89, 12", f"s_add_u32 s89, s89, {XBOX}",
      f"s_lshl_b32 s{sT0}, s2, 4", f"s_and_b32 s{sT0}, s{sT0}, 0xf80", f"s_add_u32 s{sT0}, s{sT0}, s89",
      f"v_mov_b32 v204, s88", f"v_mov_b32 v205, s{sTAG}", f"v_and_b32 v2, 0xff, v0",
      f"v_cmp_ne_u32 vcc, 0, v2", f"v_mov_b32 v206, {BIG}", f"s_nop 0", f"v_cndmask_b32 v207, 0, v206, vcc",
      f"buffer_store_dwordx2 v[204:205], v207, {srd(sWS)}, s{sT0} offen sc1"])


tokG = {}
tk = {}


X3, BX0, WOT = opt("X3", 1), opt("BX0", 1), opt("WOT", 1)
cold2 = [f"buffer_load_dword v62, v{vQT}, {srd(sWQ)}, s{sWOFF} offen", f"buffer_load_dwordx4 v[200:203], v63, {srd(sWR)}, 0 offen"]
wo_touch = f"buffer_load_dword v59, v9, {srd(sWO)}, s87 offen"


def issue_w0():
    rest_x()
    emit(w_dma(0)[:6])
    k(f"buffer_load_dwordx2 v[60:61], v3, s[80:83], s84 offen")
    if not X3:
        emit(cold2)
    stamp("w0_i")


if opt("HPRIO", 0):
    k("s_setprio 1")
UN = [w_dma(g)[3 * u:3 * u + 3] for g in range(3) for u in range(4)]
nun = [2]


def units(n):
    for _ in range(n):
        if nun[0] < 12:
            tokG[nun[0] >> 2] = emit(UN[nun[0]])
            nun[0] += 1


PREU = opt("PREU", 2)
ln_loop({0: issue_w0, opt("PREAT", 3): lambda: units(PREU)})
k.barrier()
stamp("bS")
ln_finish()
if not PE:
    k("s_barrier")
k("s_setprio 0")
xb_load = [f"buffer_load_dwordx2 v[204:205], v206, {srd(sWS)}, s89 offen sc1"]
k(f"v_and_b32 v206, 31, v{vL}")
k(f"v_lshlrev_b32 v206, 7, v206")
if opt("XBE", 1):
    tokX = emit(xb_load)
if X3:
    emit(cold2)
if WOT == 0:
    k(wo_touch)
k(f"buffer_load_dwordx2 v[{LD+16}:{LD+17}], v{vMC}, {srd(sCC)}, s86 offen")
for i in range(4):
    k(f"buffer_load_dwordx4 {R4(LD+4*i)}, v{vMO}, {srd(sWM)}, s85 offen nt")
    k(f"s_addk_i32 s85, 6144")
vWO, vDN, vGT, vBX, vXS = 1, 3, 9, 12, 13
vXW, vXD, vWT = 248, 252, 254
vA1W, vA1R, vTOK, vLK, vLC = 244, 245, 246, 247, 14
setup2 = ([f"s_bfe_u32 s{sSL}, s2, 0x30003", f"s_and_b32 s{sG4}, s2, 6", f"s_lshr_b32 s{sT0}, s2, 6", f"s_lshl1_add_u32 s{sG4}, s{sG4}, s{sT0}",
      f"s_and_b32 s{sT0}, s2, 1", f"s_lshl2_add_u32 s{sQ0}, s{sG4}, s{sT0}", f"s_lshl1_add_u32 s{sG4}, s{sG4}, s{sT0}",
      f"v_lshrrev_b32 v2, 4, v{vL}", f"v_and_b32 v192, 15, v{vL}", f"v_lshlrev_b32 v193, 4, v192",
      f"v_lshrrev_b32 v194, 5, v{vL}", f"v_lshl_add_u32 v{vBX}, v194, 14, v193", f"v_and_b32 v194, 1, v2", f"v_lshl_add_u32 v{vBX}, v194, 8, v{vBX}",
      f"v_and_b32 v192, 3, v{vL}",
      f"v_bfe_u32 v193, v{vL}, 2, 2", f"v_lshrrev_b32 v195, 5, v{vL}", f"v_lshl_add_u32 v196, v195, 2, v193", f"v_lshlrev_b32 v196, 7, v196",
      f"v_lshrrev_b32 v193, 1, v193", f"v_lshl_add_u32 v196, v193, 6, v196", f"v_lshl_add_u32 v196, v194, 5, v196", f"v_lshl_add_u32 v196, v192, 3, v196",
      f"s_mul_i32 s80, s{sV}, {XW}", f"s_add_u32 s80, s80, {WOI}", f"v_add_u32 v{vWT}, s80, v196", f"v_xor_b32 v{vWT+1}, 64, v{vWT}",
      f"v_lshrrev_b32 v196, 2, v{vC8}", f"v_mul_u32_u24 v196, 5120, v196", f"v_lshl_add_u32 v196, v195, 7, v196", f"v_lshl_add_u32 v196, v192, 5, v196",
      f"v_and_b32 v195, 1, v{vR8}", f"v_mul_u32_u24 v195, 272, v195", f"v_mul_u32_u24 v193, 640, v194", f"v_add3_u32 v196, v196, v195, v193",
      f"s_mul_i32 s{sT0}, s{sV}, 1280", f"s_add_u32 s{sT0}, s{sT0}, {WOI}", f"v_add_u32 v{vXD}, s{sT0}, v196", f"v_add_u32 v{vXD+1}, 10240, v{vXD}",
      f"v_lshlrev_b32 v195, 4, v{vC8}", f"v_lshl_add_u32 v{vXS}, v{vR8}, 10, v195"])
emit(setup2[:7])
if opt("FPRE", 0):
    emit([f"s_xor_b32 s{sT0}, s{sT0}, 1", f"s_lshl1_add_u32 s{sT0}, s{sQ0}, s{sT0}", f"s_lshl2_add_u32 s{sT0}, s{sT0}, s{sV}",
          f"s_lshr_b32 s{sT1}, s{sSL}, 2", f"s_lshl4_add_u32 s{sT0}, s{sT1}, s{sT0}", f"s_and_b32 s{sT1}, s{sSL}, 3",
          f"s_lshl2_add_u32 s{sT0}, s{sT0}, s{sT1}", f"s_lshl_b32 s{sT0}, s{sT0}, 8", f"s_add_u32 s{sT0}, s{sT0}, {OFLG}",
          f"v_lshlrev_b32 v2, 26, v{vL}", f"buffer_load_dword v58, v2, {srd(sWS)}, s{sT0} offen sc1"])
KF = opt("KF", 0)
kf_load = [f"buffer_load_dword v57, v250, {srd(sWS)}, s90 offen sc1"]
if KF:
    emit([f"s_lshl3_add_u32 s{sT0}, s{sTB}, s{sHG}", f"s_lshl_b32 s{sT0}, s{sT0}, 8", f"s_mov_b32 s90, {KFLG}",
          f"v_and_b32 v2, 3, v{vL}", f"v_add_u32 v2, 1, v2", f"v_min_u32 v2, s{sTB}, v2", f"v_lshlrev_b32 v2, 11, v2",
          f"v_sub_u32 v250, s{sT0}, v2"] + kf_load)
emit(setup2[7:])
G1E = opt("G1E", 2)
k("s_barrier")
stamp("b1")
if opt("HPRIO", 0):
    k("s_setprio 1")
units(opt("MIDU", 2))
h_phase({opt("W1AT", 1): lambda: k(wo_touch)} if WOT == 1 else None)
k("s_setprio 2")
units(min(opt("EARLY", 2), 11 - nun[0]))
assert 4 <= nun[0] <= 11
k.wait_vm(tokG[0])
k.barrier()
stamp("hB")
units(12)
gu_touch = [f"s_lshr_b32 s75, s2, 3", f"s_mul_i32 s75, s75, {16*3584}", f"v_mul_u32_u24 v9, 3584, v{vL}", f"v_lshrrev_b32 v2, 4, v{vL}",
            f"v_lshl_or_b32 v9, v2, 26, v9",
            f"s_and_b32 s{sT1}, s2, 7", f"s_mul_i32 s{sT1}, s{sT1}, 448", f"s_and_b32 s{sT1}, s{sT1}, 0xff80", f"s_add_u32 s75, s75, s{sT1}",
            f"s_lshl_b32 s{sT1}, s{sV}, 7", f"s_add_u32 s75, s75, s{sT1}"]
gu_ld = [f"buffer_load_dword v158, v9, {srd(sGA)}, s75 offen", f"buffer_load_dword v159, v9, {srd(sUP)}, s75 offen"]
for g in range(1, 4):
    k.wait_vm(tokG[g])
    k("s_barrier")
    stamp(f"L{g}")
    k("s_barrier")
    for u in range(4):
        d_ = w_dma(g + 2)[3 * u:3 * u + 3]
        k(d_[0])
        k.force_wait(vm=opt("DPACE", 7) if g < 3 else opt("DPACE5", 4))
        tokG[g + 2] = emit(d_[1:])
GUAT = opt("GUAT", 0)
if GUAT:
    emit(gu_touch + gu_ld[:1])
    gu_touch, gu_ld = [], gu_ld[1:]
if not opt("XBE", 1):
    tokX = emit(xb_load)
if WOT == 2:
    k(wo_touch)
LO = 80
k.wait_vm(tokG[4])
k("s_barrier")
stamp("L4")
if KF:
    tokKF = emit(kf_load)
k(f"v_mov_b32 v2, 0")
k(f"v_mov_b32 v184, 0")
k(f"v_mov_b32 v185, 0")
mod_prepare(sU2, L_CNT, L_SCR, LO, 74)
k.wait_vm(tokG[5])
k(f"ds_write_b64 v2, v[184:185] offset:{L_CNT}")
k.barrier()
stamp("BQ")
if KF:
    k(f"s_mov_b32 s91, s{sSPIN}")
    poll("kf", lambda: kf_load, lambda: k(f"v_cmp_ne_u32 vcc, s{sTAG}, v57"), tokKF, sleep=0)
    k(f"s_cmp_eq_u32 s91, s{sSPIN}")
    k("s_cbranch_scc1 L_kfok")
    k(f"s_sleep {opt('KFS', 6)}")
    k.label("L_kfok")
    k("s_barrier")
    stamp("BK")
flush_stamp()
k.wait_vm(tokX)
k(f"s_cmp_eq_u32 s{sU2}, 0")
k("s_cbranch_scc1 L_mod2done")
k("s_setprio 0")
mod_silu(LO, LD)
mod_dot(LO, d=LD)
mod_publish(LO, 74, "L_mod2done")
k.label("L_mod2done")
k("s_setprio 0")
k.vm = []
poll("xb", lambda: xb_load, lambda: k(f"v_cmp_ne_u32 vcc, s{sTAG}, v205"), -1, sleep=4)
sMD = 101
emit([f"v_cmp_ne_u32 vcc, s88, v204", f"v_mov_b32 v2, 0", f"s_cmp_eq_u64 vcc, 0", f"s_cselect_b32 s{sMD}, {LOC}, 0", f"v_mov_b32 v204, s{sMD}",
      f"ds_write_b32 v2, v204 offset:{L_MODE}"])
stamp("mod2")
vXRAW = 112
vWF = 16
vGA, vSB, vA2, vGB, vW2 = 192, 200, 208, 216, 224
emit([f"s_lshl_b32 s83, s{sSL}, 7", f"s_lshl2_add_u32 s81, s{sQ0}, s{sV}", f"s_lshl_b32 s81, s81, 13", f"s_add_u32 s81, s81, s83",
      f"s_add_u32 s82, s81, 65536"])
emit([f"v_and_b32 v186, 2, v{vR8}", f"v_lshlrev_b32 v186, 1, v186", f"v_xor_b32 v186, v186, v{vC8}", f"v_lshlrev_b32 v186, 4, v186",
      f"v_lshl_add_u32 v1, v{vR8}, 10, v186",
      f"s_and_b32 s69, s2, 1", f"s_xor_b32 s69, s69, 1", f"s_lshl2_add_u32 s69, s69, s{sV}", f"s_lshl_b32 s69, s69, 16",
      f"s_add_u32 s69, s69, s83", f"s_xor_b32 s71, s69, 0x40000"])
emit(gu_touch)
for i in range(4):
    for src, dst in ((200, vW2),):
        k(f"v_lshlrev_b32 v{dst+2*i}, 16, v{src+i}")
        k(f"v_and_b32 v{dst+2*i+1}, 0xffff0000, v{src+i}")
emit([f"s_lshl_b32 s{sT0}, s{sSL}, 7",
      f"s_lshl_b32 s84, s{sSL}, 11", f"s_add_u32 s84, s84, {MODBOX+16384}",
      f"s_and_b32 s{sT2}, s2, 1", f"s_xor_b32 s{sT2}, s{sT2}, 1", f"s_lshl1_add_u32 s{sT1}, s{sQ0}, s{sT2}",
      f"s_lshl2_add_u32 s{sT1}, s{sT1}, s{sV}", f"s_lshl_b32 s85, s{sT1}, 12", f"s_add_u32 s85, s85, {OBOX}",
      f"s_add_u32 s86, s85, 65536", f"s_lshl_b32 s87, s{sT1}, 10", f"s_add_u32 s87, s87, {OCHK}", f"s_add_u32 s72, s87, 16384",
      f"s_lshl_b32 s70, s{sT1}, 10", f"s_add_u32 s70, s70, {OFLG}",
      f"s_lshl_b32 s88, s{sG4}, 10", f"s_add_u32 s88, s88, {CBOX}", f"s_add_u32 s89, s88, s{sT0}",
      f"s_lshl_b32 s90, s{sG4}, 13", f"s_lshl_b32 s{sT1}, s{sV}, 10", f"s_add_u32 s90, s90, s{sT1}", f"s_add_u32 s90, s90, {A1BOX}",
      f"s_add_u32 s91, s90, 4096", f"s_lshl4_add_u32 s92, s{sSL}, s90", f"s_lshl4_add_u32 s93, s{sSL}, s91",
      f"s_lshl2_add_u32 s{sT1}, s{sG4}, s{sV}", f"s_lshl_b32 s94, s{sT1}, 13",
      f"s_add_u32 s94, s94, {CANDBOX}", f"s_lshl_b32 s95, s{sG4}, 8", f"s_add_u32 s95, s95, {A2BOX}"])
vOK, vOC = 10, 11
vFL = 191
vCC = 240
emit([f"v_lshrrev_b32 v2, 4, v{vL}", f"v_cmp_eq_u32 vcc, 2, v2", f"v_lshlrev_b32 v{vOK}, 4, v{vL}", f"v_lshlrev_b32 v{vOC}, 2, v{vL}",
      f"v_cndmask_b32 v243, 0, 1.0, vcc", f"v_lshlrev_b32 v{vLC}, 5, v{vC8}",
      f"v_lshlrev_b32 v{vA1W}, 7, v{vR8}",
      f"s_lshl2_add_u32 s{sT0}, s{sQ0}, s{sV}", f"s_lshl_b32 s{sT0}, s{sT0}, 3", f"v_add_u32 v{vTOK}, s{sT0}, v{vR8}",
      f"v_mov_b32 v{vCC+2}, s{sTAG}", f"v_lshlrev_b32 v8, 7, v{vC8}", f"v_mov_b32 v{vLK}, 0"])
emit([
      f"s_lshl1_add_u32 s{sT0}, s{sTB}, s{sQ0}", f"s_and_b32 s{sT1}, s{sQ0}, -2", f"s_sub_u32 s{sT0}, s{sT0}, s{sT1}",
      f"s_lshl3_add_u32 s{sT0}, s{sT0}, s{sHG}", f"s_lshl2_add_u32 s{sT0}, s{sT0}, s{sV}",
      f"s_lshl_b32 s{sT1}, s{sT0}, 10", f"s_add_u32 s{sT1}, s{sT1}, {OBOX+LOC}", f"v_lshrrev_b32 v153, 3, v{vL}",
      f"v_lshlrev_b32 v153, 27, v153", f"v_add3_u32 v153, v153, v8, s{sT1}",
      f"s_lshl_b32 s{sT1}, s{sT0}, 8", f"s_add_u32 s{sT1}, s{sT1}, {OCHK+LOC}", f"v_writelane_b32 v153, s{sT1}, 8",
      f"s_addk_i32 s{sT1}, 128", f"v_writelane_b32 v153, s{sT1}, 9",
      f"s_and_b32 s{sT1}, s{sT0}, -4", f"s_lshl_b32 s{sT1}, s{sT1}, 8", f"s_add_u32 s{sT1}, s{sT1}, {OFLG}", f"v_writelane_b32 v153, s{sT1}, 14",
      f"v_and_b32 v251, 1, v{vL}", f"v_lshlrev_b32 v251, 14, v251",
      f"s_add_u32 s{sT1}, s90, s83", f"v_writelane_b32 v153, s{sT1}, 10", f"s_add_u32 s{sT1}, s91, s83", f"v_writelane_b32 v153, s{sT1}, 11",
      f"v_and_b32 v{vFL}, 3, v{vC8}", f"v_lshlrev_b32 v{vFL}, 8, v{vFL}", f"v_lshrrev_b32 v2, 2, v{vC8}", f"v_lshl_add_u32 v{vFL}, v2, 14, v{vFL}",
      ] + ([f"v_readlane_b32 s{sT0}, v{vFL}, s{sSL}", f"s_add_u32 s{sT0}, s{sT0}, s70", f"v_writelane_b32 v153, s{sT0}, 12"] if opt("PRE1", 0) else []) + [
      f"s_lshl_b32 s{sT0}, s2, 5", f"s_and_b32 s{sT0}, s{sT0}, 0x1f00", f"s_add_u32 s{sT0}, s{sT0}, {A2BOX}"] +
     ([f"s_and_b32 s{sT1}, s2, 7", f"s_lshl_b32 s{sT1}, s{sT1}, 13", f"s_add_u32 s{sT0}, s{sT0}, s{sT1}"] if opt("REP", 0) else []) +
     [f"v_writelane_b32 v153, s{sT0}, 13",
      f"s_and_b32 s64, s2, 7", f"s_lshr_b32 s{sT0}, s2, 6", f"s_lshl2_add_u32 s64, s64, s{sT0}",
      f"s_lshl_b32 s65, s{sSL}, 5", f"s_add_u32 s65, s65, s64", f"s_lshl_b32 s65, s65, 4",
      f"s_lshl2_add_u32 s{sT0}, s{sT0}, s{sV}", f"s_mul_i32 s{sT0}, s{sT0}, {7*4096}", f"s_add_u32 s{sT0}, s{sT0}, s65",
      f"s_add_u32 s{sT0}, s{sT0}, {YBOX-16*4096}", ] +
     ([f"s_mov_b64 exec, 0x7f0000", f"v_lshl_add_u32 v153, v{vL}, 12, s{sT0}", "s_mov_b64 exec, -1"] if opt("YPRE", 0) else []))
pre_ld = f"buffer_load_dword v153, v153, {srd(sWS)}, 0 offen sc1"
k.barrier()
k("s_setprio 2")
stamp("Bend")


wo_st = []
for n in range(8):
    for ct in range(2):
        for jj in range(2):
            a = vWF + (n * 2 + ct) * 4 + 2 * jj
            wo_st.append(f"ds_read_b64_tr_b16 v[{a}:{a+1}], v{vWT+ct} offset:{n*2048+jj*1024}")
vB2 = 160
vO4, vOCK, vD = 80, 112, 128
P = lambda r: f"v[{r}:{r+1}]"


def b2_loads():
    return [f"buffer_load_dwordx4 {R4(vB2+4*i)}, v{vBX}, {srd(sWS)}, s84 offen offset:{i*512} sc1" for i in range(4)]


OB = [(80, 112, (85, 86, 87, 72)), (192, 232, (68, 69, 71, 73))]


def o_loads(late):
    d, c, sr = OB[late]
    o = []
    for n in range(8):
        if not late:
            o.append(f"buffer_load_dword v{c+n}, v{vOC}, {srd(sWS)}, s{sr[2+(n>>2)]} offen offset:{(n&3)*256} sc1")
        elif n & 3 == 0:
            o.append(f"buffer_load_dwordx4 {R4(c+n)}, v{vOK}, {srd(sWS)}, s{sr[2+(n>>2)]} offen sc1")
        o.append(f"buffer_load_dwordx4 {R4(d+4*n)}, v{vOK}, {srd(sWS)}, s{sr[n>>2]} offen offset:{(n&3)*1024} sc1")
    return o


def o_check(late):
    d, c, sr = OB[late]
    for n in range(8):
        k(f"v_add3_u32 v120, v{d+4*n}, v{d+4*n+1}, s{sTAG}")
        k(f"v_add3_u32 v120, v{d+4*n+2}, v{d+4*n+3}, v120")
        if n == 0:
            k(f"v_xor_b32 v2, v120, v{c}")
        else:
            k(f"v_bitop3_b32 v2, v2, v120, v{c+n} bitop3:0xf6")
    k("v_cmp_ne_u32 vcc, 0, v2")


def wo_mm(late):
    out = []
    for st in range(2):
        for ct in range(2):
            d = vD + 32 * st + 16 * ct
            for i in range(4):
                out.append(mf32(d, R4(OB[late][0] + 16 * st + 4 * i), R4(vWF + ((4 * late + i) * 2 + ct) * 4),
                                "0" if (i == 0 and not late) else f"v[{d}:{d+15}]"))
    return out


if opt("PRE1", 0):
    k(pre_ld)
else:
    gu_ld = [pre_ld] + gu_ld
COLD1 = opt("COLD1", 0)
if COLD1:
    emit(gu_ld)
fl_load = f"buffer_load_dword v120, v{vFL}, {srd(sWS)}, s70 offen sc1"


def flag_poll(name, sleep, tok="issue"):
    poll(name, lambda: [fl_load], lambda: k(f"v_cmp_ne_u32 vcc, s{sTAG}, v120"), tok, sleep=sleep)


for n in range(16):
    r = 69 if n < 8 else 71
    k.force_wait(vm=8)
    k(f"s_add_u32 m0, s80, {n*1024}")
    tokW = k(f"buffer_load_dwordx4 v1, {srd(sWO)}, s{r} offen lds")
    k(f"s_addk_i32 s{r}, 8192")
k.force_wait(vm=6)
tokB = emit(b2_loads())
COLDX = opt("COLDX", 0)
if not COLD1 and not COLDX:
    k.force_wait(vm=opt("CW", 5))
    emit(gu_ld)
stamp("wo_i")
emit([f"s_xor_b32 s{d}, s{r}, {x}" for d, r, x in zip(OB[1][2], OB[0][2], (16384, 16384, 4096, 4096))] +
     [f"s_add_u32 s{d}, s{d}, s{sMD}" for d in OB[1][2]])
vFF = 11
KEY = [124, 125]
emit([f"s_mov_b32 s{sT5}, 0xffff0000", f"v_sub_u32 v124, 2047, v{vTOK}", f"v_lshlrev_b32 v124, 1, v124", f"v_and_b32 v125, 4, v{vC8}",
      f"v_lshl_add_u32 v{vA1W}, v125, 10, v{vA1W}", f"v_lshlrev_b32 v125, 5, v125", f"v_sub_u32 v124, v124, v125",
      f"s_cmp_lg_u32 s{sSL}, 7", f"s_cselect_b32 s{sT3}, {BIG}, 0", (f"v_lshl_add_u32 v9, v{vR8}, 13, s{sT3}" if opt("REP", 0) else f"v_mov_b32 v9, s{sT3}"),
      f"v_mov_b32 v126, {BIG}", f"v_mov_b32 v127, 4096",
      f"s_lshl_b32 s{sT3}, s{sV}, 3", f"v_mov_b32 v121, s{sT3}", f"v_mov_b32 v122, 1",
      f"v_and_b32 v123, 3, v{vL}", f"v_lshlrev_b32 v7, 4, v123", f"v_lshlrev_b32 v123, 3, v123",
      f"v_lshl_add_u32 v3, v{vC8}, 4, s83", f"v_lshlrev_b32 v245, 1, v3",
      f"v_lshrrev_b32 v2, 2, v{vC8}", f"v_lshl_add_u32 v7, v2, 2, v7",
      f"s_lshr_b32 s{sT3}, s{sSL}, 1", f"s_lshl_b32 s{sT3}, s{sT3}, 6", f"s_and_b32 s{sT4}, s{sSL}, 1", f"s_lshl3_add_u32 s{sT3}, s{sT4}, s{sT3}",
      f"v_add_u32 v7, s{sT3}, v7"])
k.wait_vm(tokW)
emit(wo_st)
stamp("wo_in")
poll("b2", b2_loads, lambda: tagbyte_check(vB2, 16, 2), tokB, sleep=4)
tokF = k(fl_load)
emit(box_values(vB2, 243))
k(f"ds_write_b128 v{vOK}, {R4(vB2)} offset:{L_TAB}")
tab_rd = [f"ds_read_b128 {R4(base+4*q)}, v{vLC} offset:{L_TAB+sel*256+16*q}"
          for sel, base in ((1, vSB), (2, vA2), (0, vGA), (3, vGB)) for q in range(2)]
emit(tab_rd[:4])
emit([f"v_mul_f32 v{vCC+1}, v{vSB}, v{vW2}"] + [f"v_fmac_f32 v{vCC+1}, v{vSB+r}, v{vW2+r}" for r in range(1, 8)] +
     [f"v_mul_f32 v{vW2+r}, v{vW2+r}, v{vA2+r}" for r in range(8)] +
     [f"v_add_f32 v{vCC}, v{vW2}, v{vW2+1}"] + [f"v_add_f32 v{vCC}, v{vCC}, v{vW2+r}" for r in range(2, 8)] + dpp8([vCC, vCC + 1]))
if opt("CE", 1):
    k(f"buffer_store_dwordx3 v[{vCC}:{vCC+2}], v{vLK}, {srd(sWS)}, s89 offen sc1")
stamp("tables")
flag_poll("f0", 1, tokF)
stamp("f0")
cc_load = [f"buffer_load_dwordx3 v[{vCC}:{vCC+2}], v8, {srd(sWS)}, s88 offen sc1"]
emit(o_loads(0))
if not opt('CE', 1):
    k(f"buffer_store_dwordx3 v[{vCC}:{vCC+2}], v{vLK}, {srd(sWS)}, s89 offen sc1")

poll("o0", lambda: o_loads(0), lambda: o_check(0), -1, sleep=8)
stamp("o0_in")
k.barrier()
stamp("X0")
flush_stamp()
ll = o_loads(1) + [f"buffer_load_dwordx4 {R4(vXRAW)}, v{vXS}, {srd(sX)}, s81 offen", f"buffer_load_dwordx4 {R4(vXRAW+4)}, v{vXS}, {srd(sX)}, s82 offen"]
if opt("LF", 0):
    k(f"s_xor_b32 s70, s70, 4096")
    lf_load = [f"buffer_load_dwordx4 v[116:119], v251, {srd(sWS)}, s70 offen sc1"]

    def lf_check():
        k(f"v_xor_b32 v2, s{sTAG}, v116")
        for r in (117, 118, 119):
            k(f"v_bitop3_b32 v2, v2, v{r}, s{sTAG} bitop3:0xf6")
        k("v_cmp_ne_u32 vcc, 0, v2")
    mm0 = wo_mm(0)
    LFA, LFB = opt("LFA", 2), opt("LFB", 9)
    emit(mm0[:LFA])
    tokL = emit(lf_load)
    emit(mm0[LFA:LFB])
    poll("lf", lambda: lf_load, lf_check, tokL, sleep=0)
    for m in mm0[LFB:]:
        k(ll.pop(0))
        k(m)
else:
    for n, m in enumerate(wo_mm(0)):
        k(m)
        if n >= opt("O1AT", 3) and ll:
            k(ll.pop(0))
emit(ll)
poll("o1", lambda: o_loads(1), lambda: o_check(1), -1, sleep=0)
tk["C"] = emit(cc_load)
if COLDX:
    emit([x.replace("v158", "v122").replace("v159", "v242").replace("v9,", "v247,") for x in gu_ld] if False else [])
k("s_barrier")
stamp("o1_in")
mm = wo_mm(1)
wr = [f"ds_write_addtid_b32 v{vD+16*t+r} offset:{WOI+t*5120+(r>>2)*1280+XR[r&3]}" for t in range(4) for r in range(16)]
vX1 = [80, 88]
un = [f"s_mul_i32 m0, s{sV}, {XW}", f"v_mov_b32 v{vFF}, 0xff"]
for st in range(2):
    for i in range(4):
        un += [f"v_lshlrev_b32 v{vX1[st]+2*i}, 16, v{vXRAW+4*st+i}", f"v_and_b32 v{vX1[st]+2*i+1}, 0xffff0000, v{vXRAW+4*st+i}"]
for n, m in enumerate(mm):
    k(m)
    if 2 <= n < 6:
        emit(un[:5]); un = un[5:]
    if n >= 6:
        emit(wr[:4]); wr = wr[4:]
emit(wr[:8] + tab_rd + wr[8:])
k.barrier()
stamp("X1")
flush_stamp()
for st in range(2):
    for w in range(4):
        for e in range(2):
            k(f"ds_read_b128 {R4(16+32*st+8*w+4*e)}, v{vXD+st} offset:{w*XW+16*e}")
for st in range(2):
    e, x, t = 16 + 32 * st, vX1[st], 96 + 8 * st
    for a_, b_ in ((0, 8), (16, 24), (0, 16)):
        for i in range(4):
            k(f"v_pk_add_f32 {P(e+a_+2*i)}, {P(e+a_+2*i)}, {P(e+b_+2*i)}")
    for i in range(4):
        k(f"v_pk_fma_f32 {P(x+2*i)}, {P(e+2*i)}, {P(vGA+2*i)}, {P(x+2*i)}")
    emit([f"v_pk_add_f32 {P(t)}, {P(x)}, {P(x+2)}", f"v_pk_mul_f32 {P(t+2)}, {P(x)}, {P(x)}", f"v_pk_mul_f32 {P(t+4)}, {P(x)}, {P(vW2)}"])
    for i in range(1, 4):
        if i > 1:
            k(f"v_pk_add_f32 {P(t)}, {P(t)}, {P(x+2*i)}")
        k(f"v_pk_fma_f32 {P(t+2)}, {P(x+2*i)}, {P(x+2*i)}, {P(t+2)}")
        k(f"v_pk_fma_f32 {P(t+4)}, {P(x+2*i)}, {P(vW2+2*i)}, {P(t+4)}")
    emit([f"v_add_f32 v{t}, v{t}, v{t+1}", f"v_add_f32 v{t+1}, v{t+2}, v{t+3}", f"v_add_f32 v{t+2}, v{t+4}, v{t+5}"])


def merge8(a, b):
    o = [f"v_add_f32_dpp v{a+i}, v{a+i}, v{a+i} row_half_mirror row_mask:0xf bank_mask:0x5" for i in range(3)]
    o += [f"v_add_f32_dpp v{a+i}, v{b+i}, v{b+i} row_half_mirror row_mask:0xf bank_mask:0xa" for i in range(3)]
    return o + [f"v_add_f32_dpp v{a+i}, v{a+i}, v{a+i} {m}" for m in ST16[:2] for i in range(3)]


emit([f"v_mov_b32 v99, s{sTAG}", f"s_cmp_eq_u32 s{sMD}, 0"] + merge8(96, 104) +
     [f"s_cbranch_scc1 L_a1far", f"buffer_store_dwordx4 {R4(96)}, v{vA1W}, {srd(sWS)}, s92 offen"])
k.label(f"L_a1done")
extra_blocks.append((f"L_a1far", [f"buffer_store_dwordx4 {R4(96)}, v{vA1W}, {srd(sWS)}, s92 offen sc1"], f"L_a1done"))
stamp("a1_pub")
FB = [128, 160]


def a1_loads():
    return [f"buffer_load_dwordx4 {R4(FB[st])}, v{vOK}, {srd(sWS)}, s{90+st} offen sc1" for st in range(2)]


def a1_check():
    k(f"v_xor_b32 v2, s{sTAG}, v{FB[0]+3}")
    k(f"v_bitop3_b32 v2, v2, v{FB[1]+3}, s{sTAG} bitop3:0xf6")
    k("v_cmp_ne_u32 vcc, 0, v2")


poll("cc", lambda: cc_load, lambda: k(f"v_cmp_ne_u32 vcc, s{sTAG}, v{vCC+2}"), tk["C"])
emit(dpp8([vCC, vCC + 1]))
if opt("A1SLEEP", 1):
    k(f"s_sleep {opt('A1SLEEP', 1)}")
poll("a1", a1_loads, a1_check, sleep=0)
X2L = opt("X2L", 0)
if not X2L:
    k("s_barrier")
stamp("a1_in")


def fin_rows(st):
    b, x = FB[st], vX1[st]
    o = [f"v_pk_fma_f32 {P(b+8+2*i)}, {P(x+2*i)}, {P(b+4)}, {P(b+4)} op_sel:[0,0,1] op_sel_hi:[1,0,1]" for i in range(4)]
    o += [f"v_pk_fma_f32 {P(b+8+2*i)}, {P(b+8+2*i)}, {P(vA2+2*i)}, {P(vSB+2*i)}" for i in range(4)]
    o += [f"v_cvt_pk_bf16_f32 v{b+16+i}, v{b+8+2*i}, v{b+9+2*i}" for i in range(4)]
    o += [f"v_add3_u32 v{b+7}, v{b+16}, v{b+17}, s{sTAG}", f"v_add3_u32 v{b+7}, v{b+18}, v{b+19}, v{b+7}"]
    o2 = [f"v_pk_fma_f32 {P(b+24+2*i)}, {P(b+8+2*i)}, {P(vGB+2*i)}, {P(x+2*i)}" for i in range(4)]
    o2 += [f"v_cvt_pk_bf16_f32 v{b+20+i}, v{b+24+2*i}, v{b+25+2*i}" for i in range(4)]
    o2 += [f"v_bfi_b32 v{b+24+i}, v{vFF}, s{TAGB[i&3]}, v{b+24+i}" for i in range(8)]
    return o, o2


b = FB[0]
emit(merge8(FB[0], FB[1]) + ln_chain(b, b + 1, b + 4) +
     [f"v_fma_f32 v{b+2}, v{b}, v{vCC}, v{b+2}", f"v_mov_b64 {P(FB[1]+4)}, {P(b+4)}",
      f"v_fma_f32 v{b+2}, v{b+2}, v{b+4}, v{vCC+1}", f"v_cvt_pk_bf16_f32 v{b+2}, v{b+2}, v{b+2}",
      f"v_ashrrev_i32 v{b+3}, 31, v{b+2}", f"v_or_b32 v{b+3}, 0x80000000, v{b+3}", f"v_xor_b32 v{b+3}, v{b+3}, v{b+2}",
      f"v_and_or_b32 v16, v{b+3}, s{sT5}, v124", f"v_mov_b32 v124, v16", f"v_mov_b32 v125, v16"])
sp = [f"v_mov_b32_dpp v{r}, v{r} row_half_mirror row_mask:0xf bank_mask:{m}" for r, m in
      ((FB[0] + 4, "0xa"), (FB[0] + 5, "0xa"), (FB[1] + 4, "0x5"), (FB[1] + 5, "0x5"), (124, "0xa"), (125, "0x5"))]
a0, b0 = fin_rows(0)
a1, b1 = fin_rows(1)
a_ = sp + a0 + a1
k(f"v_min_u32_dpp v17, v16, v16 row_half_mirror{FM}")
k(f"v_max_u32_dpp v16, v16, v16 row_half_mirror{FM}")
k(a_.pop(0)); k(a_.pop(0))
a_ = top2(16, 17, 18, ["row_ror:8" + FM] + BC, a_)
k(f"v_or_b32 v19, 1, v17")
k(f"v_mov_b32 v18, v16")
k("s_lshl_b64 exec, 1, 63")
k(f"ds_write_b64 v121, v[18:19] offset:{L_REC}")
k(f"ds_add_rtn_u32 v122, v{vLK}, v122 offset:{L_CNT2}")
k("s_mov_b64 exec, -1")
k(f"ds_read_b64 v[20:21], v123 offset:{L_REC}")
k(f"v_readlane_b32 s{sK1}, v16, 63")
k(f"v_readlane_b32 s{sK2}, v17, 63")
k(f"v_mov_b32 v22, s{sTAG}")
emit(a_[:13])
a_ = a_[13:]
k(f"v_readlane_b32 s{sT0}, v122, 63")
a_ = top2(20, 21, 18, ST16[:2], a_)
k(f"s_cmp_lg_u32 s{sT0}, 3")
k(f"s_cselect_b32 s{sT0}, {BIG}, 0")
k(f"v_or_b32 v9, s{sT0}, v9")
k(f"buffer_store_dwordx3 v[20:22], v9, {srd(sWS)}, s95 offen sc1")
if X2L == 1:
    k("s_barrier")
stamp("a2_pub")
for st in range(2):
    b = FB[st]
    k(f"v_cmp_eq_u32 vcc, s{sK2}, v{KEY[st]}")
    k(f"v_cmp_eq_u32 s[{sT3}:{sT3+1}], s{sK1}, v{KEY[st]}")
    k(a_.pop(0))
    k(f"v_cndmask_b32 v{24+st}, v126, v127, vcc")
    k(f"v_cndmask_b32 v{24+st}, v{24+st}, 0, s[{sT3}:{sT3+1}]")
    if st == 1:
        emit(a_)
    k(f"v_add_u32 v26, v{24+st}, v3")
    k(f"v_add_u32 v27, v{24+st}, v7")
    k(f"buffer_store_dwordx4 {R4(b+16)}, v26, {srd(sWS)}, s94 offen sc1")
    k(f"buffer_store_dword v{b+7}, v27, {srd(sWS)}, s94 offen offset:1024 sc1")
if X2L == 2:
    k("s_barrier")
for st, bb_ in enumerate((b0, b1)):
    emit(bb_)
    k(f"v_add_u32 v{24+st}, v{24+st}, v245")
    for e in range(2):
        k(f"buffer_store_dwordx4 {R4(FB[st]+24+4*e)}, v{24+st}, {srd(sWS)}, s94 offen offset:{2048+16*e} sc1")
stamp("cand")
top2_fetch(16)
k(f"v_mov_b32 v2, {BIG}")
for qt in range(2):
    if qt:
        k(f"v_add_u32 v{vTOK}, 64, v{vTOK}")
    k(f"v_cmp_eq_u32 vcc, s{sTK1}, v{vTOK}")
    k(f"v_cmp_eq_u32 s[{sT3}:{sT3+1}], s{sTK2}, v{vTOK}")
    k(f"s_or_b64 vcc, vcc, s[{sT3}:{sT3+1}]")
    k(f"v_cndmask_b32 v{16+qt}, v{vXS}, v2, vcc")
    fl_ = {0: "", 1: " sc1", 2: " nt"}[opt("OUTF", 2)]
    k(f"buffer_store_dwordx4 {R4(FB[qt]+20)}, v{16+qt}, {srd(sOUT)}, s{81+qt} offen{fl_}")
stamp("out")
flush_stamp()
k(f"s_cmp_eq_u32 s{sV}, 0")
k("s_cbranch_scc0 L_hfin")
cand_offsets()
emit([f"v_cmp_gt_u32 vcc, 32, v{vL}", f"v_bfe_u32 v40, v{vL}, 4, 1", f"s_lshl3_add_u32 s{sT4}, s64, {L_TAB+768}",
      f"v_lshl_add_u32 v41, v40, 2, s{sT4}", f"ds_read_b32 v41, v41"])
for d, a_, b_ in ((42, sC1, sC2), (43, sK1, sK2), (44, sTK1, sTK2)):
    k(f"v_mov_b32 v{d}, s{b_}")
    k(f"v_mov_b32 v2, s{a_}")
    k(f"v_cndmask_b32 v{d}, v{d}, v2, vcc")
emit([f"v_lshl_add_u32 v42, v40, 2, v42", f"v_and_b32 v43, 0xffff0000, v43", f"v_ashrrev_i32 v2, 31, v43", f"v_not_b32 v2, v2",
      f"v_or_b32 v2, 0x80000000, v2", f"v_xor_b32 v43, v43, v2", f"v_and_b32 v43, 0xffff0000, v43",
      f"v_mul_f32 v43, 0xbfb8aa3b, v43", f"v_exp_f32 v43, v43", f"v_lshlrev_b32 v44, 10, v44", f"v_add_f32 v43, 1.0, v43",
      f"v_rcp_f32 v43, v43", f"v_lshl_add_u32 v44, v40, 1, v44"] + bf16r(43) +
     [f"v_mul_f32 v43, v43, v41",
      f"s_lshr_b32 s72, s65, 1", f"s_add_u32 s72, s72, {CANDBOX+2048}", f"s_lshr_b32 s73, s65, 2", f"s_add_u32 s65, s65, {YBOX}",
      f"s_and_b32 s{sT4}, s64, 1", f"s_lshl_b32 s{sT4}, s{sT4}, 4", f"v_lshl_add_u32 v45, v40, 3, s{sT4}", f"v_lshrrev_b32 v45, v45, s{sTAG}",
      f"v_and_b32 v45, 0xff, v45",
      f"v_lshlrev_b32 v46, 12, v{vL}", f"v_cmp_gt_u32 vcc, 48, v{vL}", f"v_add_u32 v47, {64*4096}, v46", f"v_mov_b32 v2, {BIG}",
      f"v_cndmask_b32 v47, v2, v47, vcc"])
bs_load = [f"buffer_load_dword v48, v42, {srd(sWS)}, s72 offen sc1"]
k(f"s_lshr_b32 s{sT0}, s2, 6")
k(f"s_lshl2_add_u32 s{sT0}, s{sSL}, s{sT0}")
k(f"s_cmp_lt_u32 s{sT0}, 14")
k("s_cbranch_scc1 L_x4")
k(f"s_sleep {opt('YS2', 14)}")
k.label("L_x4")
k("s_barrier")


def bs_check():
    k(f"v_xor_b32 v48, v48, v45")
    k(f"v_and_b32 v2, 0xff, v48")
    k("v_cmp_ne_u32 vcc, 0, v2")


poll("bs", lambda: bs_load, bs_check, sleep=2)
if opt("YSLEEP", 19):
    k(f"s_sleep {opt('YSLEEP', 19)}")


def y_check():
    for i in range(4):
        k(f"v_xor_b32 v{32+i}, s{TAGB[i]}, v{32+i}")
    k(f"v_or3_b32 v2, v32, v33, v34")
    k("s_movk_i32 exec_hi, 0xffff" if False else "s_mov_b32 exec_hi, 0xffff")
    for i in range(4):
        k(f"v_xor_b32 v{36+i}, s{TAGB[i]}, v{36+i}")
    k("s_mov_b32 exec_hi, -1")
    k(f"v_or3_b32 v2, v2, v35, v36")
    k(f"v_pk_add_f32 v[32:33], v[32:33], v[36:37]")
    k(f"v_or3_b32 v2, v2, v37, v38")
    k(f"v_pk_add_f32 v[34:35], v[34:35], v[38:39]")
    k(f"v_or_b32 v2, v2, v39")
    k(f"v_and_b32 v2, 0xff, v2")
    k("v_cmp_ne_u32 vcc, 0, v2")


poll("y", lambda: [f"buffer_load_dwordx4 v[32:35], v46, {srd(sWS)}, s65 offen sc1", f"buffer_load_dwordx4 v[36:39], v47, {srd(sWS)}, s65 offen sc1"],
     y_check, sleep=opt("YRS", 2))
stamp("y_in")
emit([f"v_permlane32_swap_b32 v32, v33", f"v_permlane32_swap_b32 v34, v35", f"v_add_f32 v32, v32, v33", f"v_add_f32 v34, v34, v35",
      f"v_permlane16_swap_b32 v32, v34", f"v_add_f32 v32, v32, v34"] +
     [f"v_add_f32_dpp v32, v32, v32 {m}" for m in ST16] + bf16r(32) +
     [f"v_fma_f32 v32, v32, v43, v48", f"v_cvt_pk_bf16_f32 v32, v32, v32",
      f"buffer_store_short v32, v44, {srd(sOUT)}, s73 offen"])
flush_stamp()
k(f"s_cmp_lg_u32 s2, 0")
k("s_cbranch_scc1 L_hfin")
k(f"v_mov_b32 v2, 0")
k(f"v_mov_b32 v3, s{sTAG}")
k(f"buffer_store_dword v3, v2, {srd(sWS)}, 0 offen offset:{CTL} sc1")
k.label("L_hfin")
finish()
emit_tail_blocks()
k.label("L_exit")
k("s_endpgm")
k.raw("L_code_end:")
k.raw(exact_code.text())

HEADER = open("cdna_kernels/" + NAME + ".s.ref").read().split("; Override launch")[0]
src = HEADER + f"; @launch grid=(256,1,1) block=(512,1,1) lds={LDS_BYTES}\n"
src += f""".amdgcn_target "amdgcn-amd-amdhsa--gfx950"
.text
.globl {NAME}_kernel
.p2align 8
.type {NAME}_kernel,@function
{NAME}_kernel:
{k.text()}.section .rodata,"a"
.p2align 6
.amdhsa_kernel {NAME}_kernel
  .amdhsa_next_free_vgpr 256
  .amdhsa_next_free_sgpr 102
  .amdhsa_accum_offset 256
  .amdhsa_group_segment_fixed_size 0
  .amdhsa_kernarg_size 104
  .amdhsa_user_sgpr_count 2
  .amdhsa_user_sgpr_kernarg_segment_ptr 1
  .amdhsa_system_sgpr_workgroup_id_x 1
.end_amdhsa_kernel
"""
outp = "k.s"
for a_ in sys.argv:
    if a_.startswith("--out="):
        outp = a_[6:]
open(outp, "w").write(src)
if STAMP:
    json.dump(dict(stamps=stamp_names, DBG=DBG, A2BOX=A2BOX, WS_BYTES=WS_BYTES, opt=OPT), open(outp + ".json", "w"))
print("wrote", outp, "nops", k.nops, "lines", len(k.out))
```
